```python
import torch

def _softmax(x, axis=-1):
    return torch.softmax(x, dim=axis)

def _gelu(x):
    return torch.nn.functional.gelu(x, approximate='tanh')

def _silu(x):
    return torch.nn.functional.silu(x)

def _sigmoid(x):
    return torch.sigmoid(x)

def _layernorm(x, axis=-1, eps=1e-05):
    m = x.mean(dim=axis, keepdim=True)
    v = x.var(dim=axis, keepdim=True, unbiased=False)
    return (x - m) / torch.sqrt(v + eps)

def _scatter_add(tgt, idx, src, axis=0):
    return tgt.clone().index_add_(axis, idx, src)

def _segment_sum(src, seg, n):
    out = torch.zeros((n,) + src.shape[1:], dtype=src.dtype)
    return out.index_add_(0, seg, src)

def _pad(x, pw):
    flat = tuple((v for pair in reversed(pw) for v in pair))
    return torch.nn.functional.pad(x, flat)
kernel_name = 'adaLN_cond__sliding_local_dilated__mixer_s_mlp__prompt'

def setup_inputs():

    _w = lambda a: (lambda t: t.to(torch.bfloat16) if t.is_floating_point() else t)(torch.as_tensor(a))

    def _A_setup():
        B, S, D = (1, 2048, 512)
        return {'x': _w((lambda *s: torch.randn(*s, dtype=torch.bfloat16) * 0.05)(B, S, D)), 'wqkv': _w((lambda *s: torch.randn(*s, dtype=torch.bfloat16) * 0.05)(D, 3 * D)), 'wo': _w((lambda *s: torch.randn(*s, dtype=torch.bfloat16) * 0.05)(D, D))}
    _A_in = _A_setup()

    def _B_setup():
        B, S, D, F = (1, 2048, 512, 1376)
        return {'x': _w((lambda *s: torch.randn(*s, dtype=torch.bfloat16) * 0.05)(B, S, D)), 'w1': _w((lambda *s: torch.randn(*s, dtype=torch.bfloat16) * 3.2)(D, D) * D ** (-0.5)), 'w2': _w((lambda *s: torch.randn(*s, dtype=torch.bfloat16) * 3.2)(D, D) * D ** (-0.5)), 'w3': _w((lambda *s: torch.randn(*s, dtype=torch.bfloat16) * 3.2)(D, F) * D ** (-0.5)), 'w4': _w((lambda *s: torch.randn(*s, dtype=torch.bfloat16) * 3.2)(F, D) * F ** (-0.5))}
    _B_in = _B_setup()
    return {'A_x': _A_in['x'], 'A_wqkv': _A_in['wqkv'], 'A_wo': _A_in['wo'], 'B_x': _B_in['x'], 'B_w1': _B_in['w1'], 'B_w2': _B_in['w2'], 'B_w3': _B_in['w3'], 'B_w4': _B_in['w4'], 'c': _w((lambda *s: torch.randn(*s, dtype=torch.bfloat16) * 0.1)(1, 512) * 8.0), 'w_mod': _w((lambda *s: torch.randn(*s, dtype=torch.bfloat16) * 0.1)(512, 6 * 512) * 512 ** (-0.5) * 8.0)}

def reference(A_x, A_wqkv, A_wo, B_x, B_w1, B_w2, B_w3, B_w4, c, w_mod):

    def _A_ref(x, wqkv, wo):
        B, S, D = x.shape
        H = 32
        Dh = D // H
        W, dil = (8, 2)
        qkv = (lambda x, *d: x.permute(*d))((x @ wqkv).reshape(B, S, 3, H, Dh), 2, 0, 3, 1, 4)
        q, k, v = (qkv[0], qkv[1], qkv[2])
        scale = Dh ** (-0.5)
        pos = torch.arange(S)
        off = torch.arange(W) * dil
        idx = pos[:, None] - off[None, :]
        mask = idx >= 0
        idx_c = torch.where(mask, idx, 0).reshape(-1)
        kg = k[:, :, idx_c, :].reshape(B, H, S, W, Dh)
        vg = v[:, :, idx_c, :].reshape(B, H, S, W, Dh)
        logits = torch.einsum('bhsd,bhswd->bhsw', q, kg) * scale
        logits = torch.where(mask[None, None, :, :], logits, -1000000000.0)
        attn = _softmax(logits, axis=-1)
        o = torch.einsum('bhsw,bhswd->bhsd', attn, vg)
        return (lambda x, *d: x.permute(*d))(o, 0, 2, 1, 3).reshape(B, S, D) @ wo

    def _B_ref(x, w1, w2, w3, w4):
        B, S, D = x.shape
        h = _gelu(_layernorm(x, axis=-1) @ w1)
        c = D // 4
        g0 = _pad(h[:, :, 0 * c:1 * c], ((0, 0), (1, 0), (0, 0)))[:, :S, :]
        g1 = _pad(h[:, :, 1 * c:2 * c], ((0, 0), (0, 1), (0, 0)))[:, 1:, :]
        g2 = _pad(h[:, :, 2 * c:3 * c], ((0, 0), (2, 0), (0, 0)))[:, :S, :]
        g3 = _pad(h[:, :, 3 * c:], ((0, 0), (0, 2), (0, 0)))[:, 2:, :]
        hs = torch.concatenate([g0, g1, g2, g3], axis=-1) @ w2
        x1 = x + hs
        h2 = _gelu(_layernorm(x1, axis=-1) @ w3) @ w4
        return x1 + h2
    x = A_x
    mod = (_silu(c) @ w_mod).reshape(c.shape[0], 6, 1, -1)
    sa, ca, ga, sb, cb, gb = (mod[:, 0].clone(), mod[:, 1].clone(), mod[:, 2].clone(), mod[:, 3].clone(), mod[:, 4].clone(), mod[:, 5].clone())
    h = _layernorm(x, axis=-1) * (1 + ca) + sa
    x = x + ga * _A_ref(h, A_wqkv, A_wo)
    h = _layernorm(x, axis=-1) * (1 + cb) + sb
    x = x + gb * _B_ref(h, B_w1, B_w2, B_w3, B_w4)
    return x
```

```python
import re

TRANS = ('v_exp_f32', 'v_rcp_f32', 'v_rsq_f32', 'v_log_f32', 'v_sqrt_f32')
_reg = re.compile(r'(?<![\w.])([vs])(\d+)(?![\w:\]])|(?<![\w.])([vs])\[(\d+):(\d+)\]|\b(vcc|exec|m0)\b')


def regs_of(op):
    out = []
    for m in _reg.finditer(op):
        if m.group(1):
            out.append(m.group(1) + m.group(2))
        elif m.group(3):
            out += [m.group(3) + str(i) for i in range(int(m.group(4)), int(m.group(5)) + 1)]
        else:
            out.append(m.group(6))
    return out


class Ins:
    __slots__ = ('text', 'mn', 'kind', 'w', 'r', 'ops', 'srcc', 'ab', 'states')

    def __init__(self, text):
        self.text = text
        t = text.split(';')[0].strip()
        parts = t.split(None, 1)
        mn = parts[0]
        for suf in ('_e32', '_e64', '_dpp'):
            if mn.endswith(suf):
                mn = mn[:-len(suf)]
        self.mn = mn
        rest = parts[1] if len(parts) > 1 else ''
        ops = [o.strip() for o in re.split(r',(?![^\[]*\])', rest)] if rest else []
        self.ops = ops
        self.w, self.r = set(), set()
        self.srcc, self.ab = set(), set()
        self.states = 1
        R = lambda lst: set(x for o in lst for x in regs_of(o))
        if mn.startswith('v_mfma'):
            self.kind = 'mfma'
            self.w = R(ops[:1]); self.ab = R(ops[1:3]); self.srcc = R(ops[3:4]); self.r = self.ab | self.srcc
        elif mn.startswith('v_'):
            self.kind = 'valu'
            if mn.startswith('v_permlane'):
                self.w = R(ops[:2]); self.r = R(ops[:2])
            else:
                self.w = R(ops[:1]); self.r = R(ops[1:])
                if mn.startswith('v_fmac') or mn.startswith('v_dot2c') or mn == 'v_writelane_b32':
                    self.r |= self.w
                if 'row_' in text or 'quad_perm' in text:
                    self.r |= self.w
        elif mn.startswith('buffer_') or mn.startswith('global_'):
            self.kind = 'vmem'
            islds = re.search(r'\blds\b', t) is not None
            if 'store' in mn or islds:
                self.r = R(ops)
                if islds:
                    self.r.add('m0')
            else:
                self.w = R(ops[:1]); self.r = R(ops[1:])
        elif mn.startswith('ds_'):
            self.kind = 'ds'
            if mn.startswith('ds_read') or mn.startswith('ds_bpermute') or mn.startswith('ds_swizzle'):
                self.w = R(ops[:1]); self.r = R(ops[1:])
            else:
                self.r = R(ops)
        elif mn.startswith('s_'):
            self.kind = 'salu'
            if mn == 's_nop':
                self.states = int(ops[0], 0) + 1
            elif mn.startswith(('s_cmp', 's_cbranch', 's_branch', 's_waitcnt', 's_barrier', 's_endpgm', 's_sleep', 's_setprio')):
                self.r = R(ops)
            else:
                self.w = R(ops[:1]); self.r = R(ops[1:])
        else:
            raise ValueError('unknown instr ' + text)


def need(p, c):
    n = 0
    vw = {x for x in p.w if x[0] == 'v' and x != 'vcc'}
    sw = {x for x in p.w if x[0] == 's' or x == 'vcc'}
    if p.kind == 'valu':
        if c.kind == 'mfma' and vw & c.r:
            n = max(n, 2)
        if c.kind == 'valu':
            if c.mn.startswith('v_permlane') and vw & c.r:
                n = max(n, 2)
            if ('row_' in c.text or 'quad_perm' in c.text) and vw & c.r:
                n = max(n, 2)
            if c.mn in ('v_readlane_b32', 'v_readfirstlane_b32') and vw & c.r:
                n = max(n, 1)
            if p.mn in TRANS and c.mn not in TRANS and vw & c.r:
                n = max(n, 1)
            if sw & c.r:
                n = max(n, 4 if c.mn in ('v_readlane_b32', 'v_writelane_b32') else 2)
            if p.mn.startswith('v_dot2') and vw & (c.r | c.w):
                same_c = c.mn == p.mn and not (vw & set(x for o in c.ops[1:3] for x in regs_of(o)))
                if not same_c:
                    n = max(n, 3)
        if p.mn.startswith('v_dot2') and c.kind in ('vmem', 'ds', 'mfma') and vw & c.r:
            n = max(n, 3)
        if p.mn in TRANS and c.kind in ('vmem', 'ds') and vw & c.r:
            n = max(n, 1)
        if c.kind == 'vmem' and sw & c.r:
            n = max(n, 5)
        if c.kind == 'salu' and sw & c.r and not c.mn.startswith('s_cbranch'):
            n = max(n, 2)
    if p.kind == 'mfma':
        big = '32x32' in p.mn
        full = 12 if big else 8
        if c.kind == 'mfma':
            if p.w & c.ab:
                n = max(n, full)
            if p.w & c.srcc and not (p.w == c.srcc and big == ('32x32' in c.mn)):
                n = max(n, 10 if big else 6)
            if p.w & c.w and not (p.w & c.srcc):
                n = max(n, full)
        elif p.w & (c.r | c.w):
            n = max(n, full)
        if c.kind == 'valu' and p.srcc & c.w:
            n = max(n, 7 if big else 3)
    if p.kind == 'salu' and 'm0' in p.w and c.kind == 'vmem' and 'm0' in c.r:
        n = max(n, 1)
    if p.kind == 'vmem' and 'store' in p.mn and ('x4' in p.mn or 'x3' in p.mn):
        data = set(regs_of(p.ops[0]))
        if data & c.w:
            n = max(n, 2 if c.kind == 'valu' else 1)
    return n


class Prog:
    def __init__(self):
        self.items = []
        self.vm = 0
        self.lg = 0
        self.nlab = 0

    def __call__(self, text):
        for line in text.strip().split('\n'):
            line = line.strip()
            if not line or line.startswith(';'):
                continue
            if line.endswith(':') or line.startswith('.'):
                self.items.append(line)
                continue
            ins = Ins(line)
            self.items.append(ins)
            if ins.kind == 'vmem':
                self.vm += 1
            elif ins.kind == 'ds':
                self.lg += 1
        return self

    def label(self, base):
        self.nlab += 1
        return f'L_{base}_{self.nlab}'

    def wait_vm(self, tok):
        n = self.vm - tok
        assert n >= 0
        if n <= 63:
            self(f's_waitcnt vmcnt({n})')

    def wait_lg(self, tok):
        n = self.lg - tok
        assert n >= 0
        self(f's_waitcnt lgkmcnt({min(n, 15)})')

    def render(self):
        out = []
        hist = []
        nops = 0
        for it in self.items:
            if isinstance(it, str):
                out.append(it)
                continue
            dist = 0
            req = 0
            for p in reversed(hist):
                nd = need(p, it)
                if nd - dist > req:
                    req = nd - dist
                dist += p.states
                if dist >= 12:
                    break
            if req > 0:
                nop = Ins(f's_nop {req - 1}')
                out.append('    ' + nop.text)
                hist.append(nop)
                nops += 1
            out.append('    ' + it.text)
            hist.append(it)
            hist = hist[-16:]
        return '\n'.join(out) + '\n'
```

```python
import sys
from dsl import Prog

NAME = 'adaLN_cond__sliding_local_dilated__mixer_s_mlp__prompt'
CS = 0x100000
MODF, EPOCH, TSBASE = 0x0, 0x4000, 34 * CS
W_O, W_Y, W_HB, W_HALO, W_X1, W_U = 0x00000, 0x10000, 0x20000, 0x30000, 0x40000, 0x50000
W_ST2, W_ST4, W_MODP, W_FLAG = 0x80000, 0x84000, 0x88000, 0x90000
WS_BYTES = 35 * CS
OOB = 0x80000000
ABUF, PARK, WST, MISC = 0, 65536, 81920, 147456
XS = MISC
VEC3, SACC2, SACC4, ROWA, ROWH, ROW3 = XS, XS + 3072, XS + 4608, XS + 5120, XS + 6144, XS + 6656
MODL = MISC + 8192
WF = MISC + 14336
FASTW = WF + 32
LDS_BYTES = 163840
P_X, P_QKV, P_WO, P_W1, P_W2, P_W3, P_W4, P_C, P_WMOD, P_OUT, P_WS = 8, 10, 12, 16, 18, 20, 22, 24, 26, 28, 32
SW, SWS, SA, SB = 36, 40, 44, 48
sW, sJ, sR, sQC, sTAG, sFAST, sCB, sBUD, sXCC, sW1K, sW4K, sKOFF = range(52, 64)
sT = 64
sM = 72
sL = 80
sTS = 98
LOG2E = 1.4426950408889634
K1 = -2.0 * 0.7978845608028654 * LOG2E
K2 = K1 * 0.044715
import struct
def fbits(x): return '0x%08x' % struct.unpack('<I', struct.pack('<f', x))[0]
def srd(i): return f's[{i}:{i+3}]'
def v(a, n=1): return f'v{a}' if n == 1 else f'v[{a}:{a+n-1}]'

class Cfg:
    ts = False
    stop = 99
    force_slow = False
    w3split = (5, 6, 5)
    qkv_depth = 4
    ring_depth = 3

def mk_srd(p, s, ptr, nbytes):
    p(f's_mov_b32 s{s}, s{ptr}\ns_mov_b32 s{s+1}, s{ptr+1}\ns_mov_b32 s{s+2}, {nbytes:#x}\ns_mov_b32 s{s+3}, 0x20000')

class Team:
    def __init__(self, cfg, name, vTS, vFA, vFB, vFT):
        self.p = Prog(); self.cfg = cfg; self.name = name
        self.p.nlab = 1000 if name == 'B' else 0
        self.nts = 0; self.vTS = vTS
        self.sync_n = 0
        self.vFA, self.vFB, self.vFT = vFA, vFB, vFT
        self.nbar = 0
        self.tsnames = []
    def ts(self, name):
        if not self.cfg.ts: return
        p = self.p
        p(f's_memrealtime s[{sTS}:{sTS+1}]\ns_waitcnt lgkmcnt(0)\nv_writelane_b32 v{self.vTS}, s{sTS}, {self.nts}')
        self.tsnames.append(name); self.nts += 1
    def bar(self):
        self.p('s_barrier'); self.nbar += 1
    def tsync(self):
        p = self.p; self.sync_n += 1; n = self.sync_n; t = self.vFT
        L = p.label('ts')
        p(f'v_mov_b32 v{t}, {n}\nds_write_b32 v{self.vFA}, v{t}')
        p(f'{L}:\nds_read_b128 {v(t,4)}, v{self.vFB}\ns_sub_u32 s{sBUD}, s{sBUD}, 1\ns_cbranch_scc1 {L}x\ns_waitcnt lgkmcnt(0)')
        p(f'v_min3_u32 v{t}, v{t}, v{t+1}, v{t+2}\nv_min_u32 v{t}, v{t}, v{t+3}\nv_cmp_gt_u32 vcc, {n}, v{t}\ns_cbranch_vccnz {L}\ns_branch {L}y')
        p(f'{L}x:\ns_mov_b32 s{sBUD}, 0\ns_waitcnt lgkmcnt(0)\n{L}y:')
    def store(self, ins):
        p = self.p; L = p.label('st')
        p(f's_cmp_eq_u32 s{sFAST}, 0\ns_cbranch_scc1 {L}s')
        vm0 = p.vm
        for i in ins: p(i)
        p(f's_branch {L}e\n{L}s:')
        p.vm = vm0
        for i in ins: p(i + ' sc1' if i.startswith('buffer') else i)
        p(f'{L}e:')
    def poll(self, loads, check):
        p = self.p; L = p.label('pl')
        p(f'{L}:')
        for i in loads: p(i)
        p(f's_sub_u32 s{sBUD}, s{sBUD}, 1\ns_cbranch_scc1 {L}x\ns_waitcnt vmcnt(0)')
        for i in check: p(i)
        p(f's_cbranch_vccnz {L}\ns_branch {L}y\n{L}x:\ns_mov_b32 s{sBUD}, 0\ns_waitcnt vmcnt(0)\n{L}y:')

def lane_parts(p, vL, vS, vG):
    p(f'v_and_b32 v{vS}, 15, v{vL}\nv_lshrrev_b32 v{vG}, 4, v{vL}')

def w_src_addr(p, dst, vL, t, pitch, colbytes_s):
    p(f'''
    v_lshrrev_b32 v{t}, 3, v{vL}
    s_lshl_b32 s{sT}, s{sW}, 3
    v_add_u32 v{t}, s{sT}, v{t}
    s_mov_b32 s{sT}, {pitch}
    v_mul_lo_u32 v{dst}, v{t}, s{sT}
    v_bfe_u32 v{t}, v{vL}, 4, 1
    s_and_b32 s{sT}, s{sW}, 1
    s_lshl_b32 s{sT}, s{sT}, 1
    v_or_b32 v{t}, s{sT}, v{t}
    v_lshlrev_b32 v{t}, 1, v{t}
    v_xor_b32 v{t}, v{t}, v{vL}
    v_and_b32 v{t}, 7, v{t}
    v_lshlrev_b32 v{t}, 4, v{t}
    v_add3_u32 v{dst}, v{dst}, v{t}, s{colbytes_s}
    ''')

def tr_addr(p, dst, vL, t, gstride, base):
    p(f'''
    v_lshrrev_b32 v{t}, 4, v{vL}
    v_mul_u32_u24 v{dst}, {gstride}, v{t}
    v_and_b32 v{t}, 1, v{t}
    v_lshlrev_b32 v{t}, 1, v{t}
    v_bfe_u32 v{t+1}, v{vL}, 3, 1
    v_or_b32 v{t}, v{t}, v{t+1}
    v_xor_b32 v{t}, s{sW}, v{t}
    v_lshlrev_b32 v{t}, 5, v{t}
    v_add_u32 v{dst}, v{dst}, v{t}
    v_bfe_u32 v{t}, v{vL}, 2, 2
    v_lshlrev_b32 v{t}, 7, v{t}
    v_and_b32 v{t+1}, 3, v{vL}
    v_lshlrev_b32 v{t+1}, 3, v{t+1}
    v_add3_u32 v{dst}, v{dst}, v{t}, v{t+1}
    v_add_u32 v{dst}, {base}, v{dst}
    ''')

def koff_init(p, nsteps_rot_s, stepbytes):
    p(f's_mul_i32 s{sKOFF}, s{nsteps_rot_s}, {stepbytes}')

def koff_next(p, stepbytes, nsteps):
    p(f's_add_u32 s{sKOFF}, s{sKOFF}, {stepbytes}\ns_cmp_ge_u32 s{sKOFF}, {stepbytes*nsteps}\ns_cselect_b32 s{sKOFF}, 0, s{sKOFF}')

def ring(T, nchunks, issue, tread, nslots, depth):
    p = T.p; tok = {}
    assert depth <= nslots - 1
    for c in range(min(depth, nchunks)):
        issue(c, c % nslots); tok[c] = p.vm
    for c in range(nchunks):
        p.wait_vm(tok[c])
        p('s_waitcnt lgkmcnt(0)')
        T.tsync()
        if c + depth < nchunks:
            issue(c + depth, (c + depth) % nslots); tok[c + depth] = p.vm
        tread(c, c % nslots)
    p('s_waitcnt lgkmcnt(0)')

def xreduce4(p, a, b, c, d, op='v_add_f32'):
    p(f'v_permlane32_swap_b32 v{a}, v{c}\nv_permlane32_swap_b32 v{b}, v{d}\n{op} v{a}, v{a}, v{c}\n{op} v{b}, v{b}, v{d}')
    p(f'v_permlane16_swap_b32 v{a}, v{b}\n{op} v{a}, v{a}, v{b}')

def gemm_kmajor(T, nk, vW, vACC, vFR, vAD, chunkk=4, slot_of=None, nfr=4):
    p = T.p
    steps = [(j, t) for j in range(nk) for t in range(4)]
    def lds_off(j, t):
        c, jj = divmod(j, chunkk)
        s = slot_of(c) if slot_of else c
        return s * chunkk * 4096 + jj * 4096 + t * 256
    tok = {}
    def rd(i):
        j, t = steps[i]; o = lds_off(j, t)
        p(f'ds_read_b128 {v(vFR + 4*(i % nfr), 4)}, v{vAD[o >> 16]} offset:{o & 0xffff}'); tok[i] = p.lg
    per = chunkk * 4
    nxt = 0
    for i in range(len(steps)):
        lim = min((i // per + 1) * per, len(steps))
        if i % per == 0:
            T.bar()
        while nxt < lim and nxt < i + nfr:
            rd(nxt); nxt += 1
        j, t = steps[i]
        p.wait_lg(tok[i])
        c = '0' if j == 0 else v(vACC + 4*t, 4)
        p(f'v_mfma_f32_16x16x32_bf16 {v(vACC+4*t,4)}, {v(vW+4*j,4)}, {v(vFR+4*(i%nfr),4)}, {c}')

def adma_chunks(T, base, vOFFs, nch=4):
    p = T.p; toks = []
    for c in range(nch):
        p(f'''
        s_add_u32 s{sT}, s{sQC}, {c}
        s_and_b32 s{sT}, s{sT}, 3
        s_lshl_b32 s{sT}, s{sT}, 14
        s_add_u32 s{sT}, s{sT}, s{sW4K}
        s_add_u32 s{sT}, s{sT}, s{sCB}
        s_add_u32 s{sT}, s{sT}, {base:#x}
        s_add_u32 m0, s{sW4K}, {ABUF + c*16384}
        ''')
        for i in range(4):
            p(f'buffer_load_dwordx4 v{vOFFs[c]}, {srd(SWS)}, s{sT} offen offset:{i*1024} sc1 lds')
        toks.append(p.vm)
    return toks

def publish_and_poll(T, ph, vL, t, extra_w1=None, halo=False):
    p = T.p
    p('s_waitcnt vmcnt(0) lgkmcnt(0)')
    T.bar()
    T.ts(f'B1_{ph}')
    L = p.label('pub')
    p(f's_cmp_lg_u32 s{sW}, 0\ns_cbranch_scc1 {L}n')
    p(f's_lshl_b32 s{sT}, s{sJ}, 2\nv_mov_b32 v{t}, s{sT}\nv_mov_b32 v{t+1}, s{sTAG}\ns_add_u32 s{sT+1}, s{sCB}, {W_FLAG + ph*128:#x}')
    if halo:
        p(f'''
        s_and_b32 s{sT+2}, s{sJ}, 2
        s_cmp_eq_u32 s{sT+2}, 0
        s_mov_b32 s{sT+2}, {CS:#x}
        s_cselect_b32 s{sT+2}, s{sT+2}, {(-CS) & 0xffffffff:#x}
        s_add_u32 s{sT+2}, s{sT+2}, s{sCB}
        s_add_u32 s{sT+2}, s{sT+2}, {W_FLAG + 7*128:#x}
        buffer_store_dword v{t+1}, v{t}, {srd(SWS)}, s{sT+2} offen sc1
        ''')
    T.store([f'buffer_store_dword v{t+1}, v{t}, {srd(SWS)}, s{sT+1} offen'])
    p(f'v_and_b32 v{t}, 7, v{vL}\nv_lshlrev_b32 v{t}, 2, v{t}')
    if halo:
        p(f'''
        s_mov_b32 s{sT+2}, 0x3300
        s_cmp_eq_u32 s{sR}, 0
        s_cselect_b32 s{sT+2}, 0, s{sT+2}
        s_mov_b32 s{sT+3}, 0xcc00
        s_cmp_eq_u32 s{sR}, 31
        s_cselect_b32 s{sT+3}, 0, s{sT+3}
        s_or_b32 s{sT+2}, s{sT+2}, s{sT+3}
        s_mov_b32 s{sT+3}, 0
        v_add_u32 v{t+2}, {(7-ph)*128}, v{t}
        v_cndmask_b32 v{t}, v{t}, v{t+2}, s[{sT+2}:{sT+3}]
        ''')
    T.poll([f'buffer_load_dword v{t+2}, v{t}, {srd(SWS)}, s{sT+1} offen sc1'], [f'v_cmp_ne_u32 vcc, v{t+1}, v{t+2}'])
    if extra_w1 is not None:
        p(f's_branch {L}e\n{L}n:\ns_cmp_lg_u32 s{sW}, 1\ns_cbranch_scc1 {L}e')
        extra_w1()
        p(f'{L}e:')
    else:
        p(f'{L}n:')
    T.bar()
    T.ts(f'B2_{ph}')

def gelu_pairs(p, x, tmp, out):
    for h in (0, 2):
        p(f'v_pk_mul_f32 {v(tmp+h,2)}, {v(x+h,2)}, {v(x+h,2)}')
    for h in (0, 2):
        p(f'v_pk_fma_f32 {v(tmp+h,2)}, {v(tmp+h,2)}, s[{sT+4}:{sT+5}], s[{sT+4}:{sT+5}] op_sel:[0,0,1] op_sel_hi:[1,0,1]')
    for h in (0, 2):
        p(f'v_pk_mul_f32 {v(tmp+h,2)}, {v(tmp+h,2)}, {v(x+h,2)}')
    for i in range(4): p(f'v_exp_f32 v{tmp+i}, v{tmp+i}')
    for h in (0, 2):
        p(f'v_pk_add_f32 {v(tmp+h,2)}, {v(tmp+h,2)}, 1.0 op_sel_hi:[1,0]')
    for i in range(4): p(f'v_rcp_f32 v{tmp+i}, v{tmp+i}')
    for h in (0, 2):
        p(f'v_pk_mul_f32 {v(tmp+h,2)}, {v(tmp+h,2)}, {v(x+h,2)}')
    p(f'v_cvt_pk_bf16_f32 v{out}, v{tmp}, v{tmp+1}\nv_cvt_pk_bf16_f32 v{out+1}, v{tmp+2}, v{tmp+3}')

def pub_addr(p, dst, vL, t, oct_s, tilemajor=False):
    if not tilemajor:
        p(f'''
        v_lshrrev_b32 v{t}, 5, v{vL}
        v_add_u32 v{t}, s{oct_s}, v{t}
        v_lshlrev_b32 v{t}, 10, v{t}
        v_and_b32 v{dst}, 31, v{vL}
        v_lshl_add_u32 v{dst}, v{dst}, 4, v{t}
        ''')
    else:
        p(f'''
        v_lshrrev_b32 v{t}, 5, v{vL}
        v_add_u32 v{t}, s{oct_s}, v{t}
        v_lshlrev_b32 v{t}, 8, v{t}
        v_and_b32 v{dst}, 15, v{vL}
        v_lshl_add_u32 v{dst}, v{dst}, 4, v{t}
        v_bfe_u32 v{t}, v{vL}, 4, 1
        v_lshl_add_u32 v{dst}, v{t}, 14, v{dst}
        ''')

def w3_setup(p, vL, t, vA3):
    mk_srd(p, SW, P_W3, 512 * 2752)
    p(f's_min_u32 s{sT+6}, s{sJ}, 3\ns_mul_i32 s{sT+7}, s{sJ}, 5\ns_add_u32 s{sT+6}, s{sT+6}, s{sT+7}\ns_lshl_b32 s{sT+7}, s{sT+6}, 6')
    w_src_addr(p, vA3, vL, t, 2752, sT + 7)
    p(f'''
    v_add_u32 v{vA3+1}, 128, v{vA3}
    v_add_u32 v{vA3+2}, 256, v{vA3}
    s_cmp_lt_u32 s{sJ}, 3
    s_cselect_b32 s{sT+7}, 128, 64
    v_cmp_gt_u32 vcc, s{sT+7}, v{t}
    v_mov_b32 v{t}, {OOB:#x}
    v_cndmask_b32_e64 v{vA3+2}, v{t}, v{vA3+2}, vcc
    ''')

def w3_issue(p, vA3, ldsbase):
    for s in range(3):
        p(f's_add_u32 m0, s{sT+5}, {ldsbase + s*1024}\nbuffer_load_dwordx4 v{vA3+s}, {srd(SW)}, s{sKOFF} offen lds')
    koff_next(p, 32 * 2752, 16)

def w3_koff(p, first):
    p(f's_lshl_b32 s{sT}, s{sQC}, 2\ns_add_u32 s{sT}, s{sT}, {first}\ns_and_b32 s{sT}, s{sT}, 15\ns_mul_i32 s{sKOFF}, s{sT}, {32*2752}\ns_mul_i32 s{sT+5}, s{sW}, 3072')

def team_a(cfg):
    vL = 0
    T = Team(cfg, 'A', vTS=63, vFA=60, vFB=61, vFT=56)
    p = T.p
    WR = 64
    p(f'v_mov_b32 v{T.vFB}, {WF}\ns_lshl_b32 s{sT}, s{sW}, 2\nv_add_u32 v{T.vFA}, s{sT}, v{T.vFB}')
    mk_srd(p, SA, P_WMOD, 512 * 6144); mk_srd(p, SB, P_C, 1024)
    lane_parts(p, vL, 1, 2)
    p(f'''
    s_lshl_b32 s{sT}, s{sJ}, 6
    s_lshl_b32 s{sT+1}, s{sW}, 4
    s_add_u32 s{sT}, s{sT}, s{sT+1}
    v_lshl_add_u32 v3, v2, 2, s{sT}
    v_lshlrev_b32 v4, 1, v3
    buffer_load_dwordx2 v[6:7], v4, {srd(SB)}, 0 offen
    v_mul_u32_u24 v3, 6144, v3
    s_mul_i32 s{sT}, s{sR}, 192
    v_lshlrev_b32 v4, 4, v1
    v_add3_u32 v3, v3, v4, s{sT}
    v_cmp_gt_u32 vcc, 12, v1
    v_mov_b32 v4, {OOB:#x}
    v_cndmask_b32_e64 v3, v4, v3, vcc
    s_mov_b32 s{sT+1}, 6144
    s_mov_b32 s{sT+2}, 12288
    s_mov_b32 s{sT+3}, 18432
    buffer_load_dwordx4 v[8:11], v3, {srd(SA)}, 0 offen nt
    buffer_load_dwordx4 v[12:15], v3, {srd(SA)}, s{sT+1} offen nt
    buffer_load_dwordx4 v[16:19], v3, {srd(SA)}, s{sT+2} offen nt
    buffer_load_dwordx4 v[20:23], v3, {srd(SA)}, s{sT+3} offen nt
    ''')
    tok_mod = p.vm
    mk_srd(p, SW, P_QKV, 512 * 3072)
    vWA, vTR = 54, 55
    p(f's_lshl_b32 s{sT+7}, s{sJ}, 7')
    w_src_addr(p, vWA, vL, 4, 3072, sT + 7)
    tr_addr(p, vTR, vL, 4, 3072, WST)
    p(f's_mul_i32 s{sKOFF}, s{sQC}, {4*32*3072}\ns_mul_i32 s{sL}, s{sW}, 3072')
    def q_issue(c, slot):
        p(f's_add_u32 m0, s{sL}, {WST + slot*12288}')
        for s in range(3):
            p(f'buffer_load_dwordx4 v{vWA}, {srd(SW)}, s{sKOFF} offen offset:{s*1024} lds')
        koff_next(p, 32 * 3072, 16)
    def q_tread(c, slot):
        for s in range(3):
            for h in range(2):
                p(f'ds_read_b64_tr_b16 {v(WR + 12*c + 4*s + 2*h, 2)}, v{vTR} offset:{slot*12288 + s*1024 + h*512}')
    p(f's_waitcnt lgkmcnt(0)\ns_mul_i32 s{sTAG}, s{sTAG}, 1664525\ns_add_u32 s{sTAG}, s{sTAG}, 1013904223')
    T.bar()
    T.ts('bar0')
    def mod_stage1():
        p.wait_vm(tok_mod)
        p(f'''
        v_lshlrev_b32 v24, 16, v6
        v_and_b32 v25, 0xffff0000, v6
        v_lshlrev_b32 v26, 16, v7
        v_and_b32 v27, 0xffff0000, v7
        ''')
        for i in range(4): p(f'v_mul_f32 v{28+i}, {fbits(-LOG2E)}, v{24+i}')
        for i in range(4): p(f'v_exp_f32 v{28+i}, v{28+i}')
        for i in range(4): p(f'v_add_f32 v{28+i}, 1.0, v{28+i}')
        for i in range(4): p(f'v_rcp_f32 v{28+i}, v{28+i}')
        for i in range(4): p(f'v_mul_f32 v{24+i}, v{24+i}, v{28+i}')
        p(f'''
        v_cvt_pk_bf16_f32 v6, v24, v25
        v_cvt_pk_bf16_f32 v7, v26, v27
        v_lshlrev_b32 v24, 16, v6
        v_and_b32 v25, 0xffff0000, v6
        v_lshlrev_b32 v26, 16, v7
        v_and_b32 v27, 0xffff0000, v7
        ''')
        for i in range(4):
            for k in range(4):
                src = 8 + 4*i + k
                p(f'v_lshlrev_b32 v40, 16, v{src}\nv_and_b32 v41, 0xffff0000, v{src}')
                if i == 0:
                    p(f'v_mul_f32 v{32+2*k}, v40, v24\nv_mul_f32 v{33+2*k}, v41, v24')
                else:
                    p(f'v_fmac_f32 v{32+2*k}, v40, v{24+i}\nv_fmac_f32 v{33+2*k}, v41, v{24+i}')
        xreduce4(p, 32, 34, 36, 38)
        xreduce4(p, 33, 35, 37, 39)
        p(f'''
        v_lshl_add_u32 v3, v1, 2, v2
        v_mul_u32_u24 v4, 43, v3
        v_lshrrev_b32 v4, 8, v4
        v_mul_u32_u24 v5, 6, v4
        v_sub_u32 v3, v3, v5
        v_lshlrev_b32 v3, 4, v3
        v_lshl_add_u32 v3, v4, 12, v3
        v_cmp_gt_u32 vcc, 12, v1
        v_mov_b32 v4, {OOB:#x}
        v_cndmask_b32_e64 v3, v4, v3, vcc
        s_lshl_b32 s{sT}, s{sJ}, 2
        s_add_u32 s{sT}, s{sT}, s{sW}
        s_lshl_b32 s{sT}, s{sT}, 7
        s_add_u32 s{sT}, s{sT}, s{sCB}
        s_add_u32 s{sT}, s{sT}, {W_MODP:#x}
        v_mov_b32 v34, s{sTAG}
        v_mov_b32 v35, s{sXCC}
        buffer_store_dwordx4 v[32:35], v3, {srd(SWS)}, s{sT} offen sc1
        ''')
        T.ts('mod1')
    nsl, dep = 5, cfg.qkv_depth
    tok = {}
    for c in range(dep):
        q_issue(c, c % nsl); tok[c] = p.vm
    mod_stage1()
    for c in range(16):
        p.wait_vm(tok[c]); p('s_waitcnt lgkmcnt(0)'); T.tsync()
        if c + dep < 16:
            q_issue(c + dep, (c + dep) % nsl); tok[c + dep] = p.vm
        q_tread(c, c % nsl)
    vFR, vQ, vK, vV = 4, 20, 24, 28
    vKB, vVB, vQB, vP, vSEL, vONE, vOUT, vT_, vAE, vAO, vST = 32, 36, 40, 42, 46, 50, 54, 58, 1, 2, 3
    p('s_waitcnt lgkmcnt(0)')
    p(f'''
    v_and_b32 v4, 15, v0
    v_lshrrev_b32 v5, 4, v0
    v_and_b32 v6, 1, v0
    v_cmp_eq_u32 s[{sM}:{sM+1}], 1, v6
    v_lshl_add_u32 v7, v5, 2, v6
    v_cmp_le_u32 s[{sM+2}:{sM+3}], v7, v4
    v_add_u32 v7, 2, v7
    v_cmp_le_u32 s[{sM+4}:{sM+5}], v7, v4
    v_mov_b32 v8, 0x0c0c0100
    v_mov_b32 v9, 0x01000c0c
    v_mov_b32 v10, 0x0c0c0302
    v_mov_b32 v11, 0x03020c0c
    v_mov_b32 v12, 0x0c0c0c0c
    v_cndmask_b32 v8, v8, v9, s[{sM}:{sM+1}]
    v_cndmask_b32 v10, v10, v11, s[{sM}:{sM+1}]
    v_cndmask_b32 v{vSEL}, v12, v8, s[{sM+2}:{sM+3}]
    v_cndmask_b32 v{vSEL+1}, v12, v10, s[{sM+4}:{sM+5}]
    v_cndmask_b32 v{vSEL+2}, v8, v12, s[{sM+2}:{sM+3}]
    v_cndmask_b32 v{vSEL+3}, v10, v12, s[{sM+4}:{sM+5}]
    v_xor_b32 v6, v4, v5
    v_and_b32 v6, 7, v6
    v_and_b32 v7, 8, v4
    v_or_b32 v6, v6, v7
    v_lshlrev_b32 v6, 4, v6
    v_lshl_add_u32 v{vAE}, v5, 8, v6
    v_xor_b32 v{vAO}, 64, v{vAE}
    s_cmp_eq_u32 s{sR}, 0
    s_cselect_b32 s{sL}, {fbits(-1e30)}, 0
    s_mov_b32 s{sL+1}, {fbits(0.25*LOG2E)}
    s_lshl_b32 s{sT}, s{sJ}, 3
    s_lshl_b32 s{sT+1}, s{sW}, 1
    s_add_u32 s{sL+2}, s{sT}, s{sT+1}
    ''')
    for i in range(4): p(f'v_mov_b32 v{vONE+i}, 0x3f803f80')
    pub_addr(p, vST, vL, 4, sL + 2)
    T.ts('wq_done')
    T.bar()
    T.ts('h0')
    p(f'v_mov_b32 v4, {FASTW}\nds_read_b32 v4, v4\ns_waitcnt lgkmcnt(0)\nv_readfirstlane_b32 s{sFAST}, v4')
    for t in range(5):
        if t == 4:
            p(f'v_add_u32 v{vAE}, 0x10000, v{vAE}\nv_add_u32 v{vAO}, 0x10000, v{vAO}')
        tk = {}
        def rd(j):
            p(f'ds_read_b128 {v(vFR+4*(j%4),4)}, v{vAO if j & 1 else vAE} offset:{(t % 4)*16384 + j*1024}'); tk[j] = p.lg
        for j in range(3): rd(j)
        for j in range(16):
            if j + 3 < 16: rd(j + 3)
            p.wait_lg(tk[j])
            f = v(vFR + 4*(j % 4), 4); w = WR + 12*j
            cc = lambda a: '0' if j == 0 else v(a, 4)
            p(f'v_mfma_f32_16x16x32_bf16 {v(vK,4)}, {v(w+4,4)}, {f}, {cc(vK)}')
            p(f'v_mfma_f32_16x16x32_bf16 {v(vV,4)}, {f}, {v(w+8,4)}, {cc(vV)}')
            if t > 0:
                p(f'v_mfma_f32_16x16x32_bf16 {v(vQ,4)}, {v(w,4)}, {f}, {cc(vQ)}')
        cur, prv = 2*(t & 1), 2*((t+1) & 1)
        p(f'''
        v_cvt_pk_bf16_f32 v{vKB+cur}, v{vK}, v{vK+1}
        v_cvt_pk_bf16_f32 v{vKB+cur+1}, v{vK+2}, v{vK+3}
        v_cvt_pk_bf16_f32 v{vVB+cur}, v{vV}, v{vV+1}
        v_cvt_pk_bf16_f32 v{vVB+cur+1}, v{vV+2}, v{vV+3}
        ''')
        if t == 0: continue
        odd, m0, m1 = f's[{sM}:{sM+1}]', f's[{sM+2}:{sM+3}]', f's[{sM+4}:{sM+5}]'
        a, b = vT_, vT_ + 1
        p(f'''
        v_cvt_pk_bf16_f32 v{vQB}, v{vQ}, v{vQ+1}
        v_cvt_pk_bf16_f32 v{vQB+1}, v{vQ+2}, v{vQ+3}
        v_mfma_f32_16x16x16_bf16 {v(vK,4)}, {v(vKB+cur,2)}, {v(vQB,2)}, 0
        v_mfma_f32_16x16x16_bf16 {v(vV,4)}, {v(vKB+prv,2)}, {v(vQB,2)}, 0
        v_cndmask_b32 v{vQ}, v{vK}, v{vK+1}, {odd}
        v_cndmask_b32 v{vQ+1}, v{vK+2}, v{vK+3}, {odd}
        v_cndmask_b32 v{vQ+2}, v{vV}, v{vV+1}, {odd}
        v_cndmask_b32 v{vQ+3}, v{vV+2}, v{vV+3}, {odd}
        ''')
        if t == 1:
            p(f'v_add_f32 v{vQ+2}, s{sL}, v{vQ+2}\nv_add_f32 v{vQ+3}, s{sL}, v{vQ+3}')
        p(f'''
        v_cndmask_b32 v{vQ}, v{vQ+2}, v{vQ}, {m0}
        v_cndmask_b32 v{vQ+1}, v{vQ+3}, v{vQ+1}, {m1}
        v_max_f32 v{a}, v{vQ}, v{vQ+1}
        v_mov_b32 v{b}, v{a}
        v_permlane32_swap_b32 v{a}, v{b}
        v_max_f32 v{a}, v{a}, v{b}
        v_mov_b32 v{b}, v{a}
        v_permlane16_swap_b32 v{a}, v{b}
        v_max_f32 v{a}, v{a}, v{b}
        v_sub_f32 v{vQ}, v{vQ}, v{a}
        v_sub_f32 v{vQ+1}, v{vQ+1}, v{a}
        v_mul_f32 v{vQ}, s{sL+1}, v{vQ}
        v_mul_f32 v{vQ+1}, s{sL+1}, v{vQ+1}
        v_exp_f32 v{vQ}, v{vQ}
        v_exp_f32 v{vQ+1}, v{vQ+1}
        v_cvt_pk_bf16_f32 v{a}, v{vQ}, v{vQ+1}
        v_perm_b32 v{vP+cur}, v{a}, v{a}, v{vSEL}
        v_perm_b32 v{vP+cur+1}, v{a}, v{a}, v{vSEL+1}
        v_perm_b32 v{vP+prv}, v{a}, v{a}, v{vSEL+2}
        v_perm_b32 v{vP+prv+1}, v{a}, v{a}, v{vSEL+3}
        v_mfma_f32_16x16x32_bf16 {v(vK,4)}, {v(vONE,4)}, {v(vP,4)}, 0
        v_mfma_f32_16x16x32_bf16 {v(vV,4)}, {v(vVB,4)}, {v(vP,4)}, 0
        v_rcp_f32 v{a}, v{vK}
        v_mul_f32 v{vQ}, v{vV}, v{a}
        v_mul_f32 v{vQ+1}, v{vV+1}, v{a}
        v_mul_f32 v{vQ+2}, v{vV+2}, v{a}
        v_mul_f32 v{vQ+3}, v{vV+3}, v{a}
        ''')
        o = vOUT + 2*((t-1) & 1)
        p(f'v_cvt_pk_bf16_f32 v{o}, v{vQ}, v{vQ+1}\nv_cvt_pk_bf16_f32 v{o+1}, v{vQ+2}, v{vQ+3}')
        if t in (2, 4):
            p(f'v_permlane16_swap_b32 v{vOUT}, v{vOUT+2}\nv_permlane16_swap_b32 v{vOUT+1}, v{vOUT+3}\ns_add_u32 s{sT}, s{sCB}, {W_O:#x}')
            T.store([f'buffer_store_dwordx4 {v(vOUT,4)}, v{vST}, {srd(SWS)}, s{sT} offen offset:{(t//2-1)*512}'])
            p('s_nop 1')
    T.ts('p1_done')
    vLIN = 1
    p(f'v_lshlrev_b32 v{vLIN}, 4, v0')
    publish_and_poll(T, 1, vL, 4)
    toks = adma_chunks(T, W_O, [vLIN]*4)
    for c in range(4):
        p.wait_vm(toks[c]); T.bar()
    T.ts('a2_done')
    W1R = 192
    vTR1, vTR3, vA3 = 4, 5, 6
    vG1, vS1, vC1, vC3 = 20, 24, 28, 32
    tr_addr(p, vTR1, vL, 10, 1024, WST)
    for j in range(16):
        for h in range(2):
            p(f'ds_read_b64_tr_b16 {v(W1R + 4*j + 2*h, 2)}, v{vTR1} offset:{j*4096 + h*512}')
    w3_setup(p, vL, 10, vA3)
    tr_addr(p, vTR3, vL, 10, 3072, PARK)
    n_a, n_b, n_c = cfg.w3split
    p('s_waitcnt lgkmcnt(0)'); T.tsync()
    w3_koff(p, 0)
    for c in range(n_a): w3_issue(p, vA3, PARK + c*12288)
    p(f'''
    v_and_b32 v10, 15, v0
    v_min_u32 v10, 2, v10
    v_lshlrev_b32 v10, 10, v10
    v_lshrrev_b32 v11, 4, v0
    v_lshl_add_u32 v10, v11, 4, v10
    v_add_u32 v10, {VEC3}, v10
    ''')
    for j in range(16):
        p(f'ds_read_b128 {v(12,4)}, v10 offset:{j*64}\ns_waitcnt lgkmcnt(0)')
        p(f'v_mfma_f32_16x16x32_bf16 {v(16,4)}, {v(W1R+4*j,4)}, {v(12,4)}, {"0" if j == 0 else v(16,4)}')
    for i in range(4):
        p(f'v_mov_b32_dpp v{vG1+i}, v{16+i} row_newbcast:0 row_mask:0xf bank_mask:0xf')
        p(f'v_mov_b32_dpp v{vS1+i}, v{16+i} row_newbcast:1 row_mask:0xf bank_mask:0xf')
        p(f'v_mov_b32_dpp v{vC1+i}, v{16+i} row_newbcast:2 row_mask:0xf bank_mask:0xf')
    def w3_tread(first, n, slot0=0):
        for c in range(n):
            jj = first + c
            o = (slot0 + c) * 12288
            if o + 3072 > 65535 - 0: pass
            for s in range(3):
                for h in range(2):
                    p(f'ds_read_b64_tr_b16 {v(WR + 12*jj + 4*s + 2*h, 2)}, v{vTR3} offset:{o + s*1024 + h*512}')
        p('s_waitcnt lgkmcnt(0)')
        for c in range(n):
            jj = first + c
            for s in range(3):
                p(f'v_mfma_f32_16x16x32_bf16 {v(vC3+4*s,4)}, {v(WR+12*jj+4*s,4)}, {v(vONE,4)}, {"0" if jj == 0 else v(vC3+4*s,4)}')
    p('s_waitcnt vmcnt(0)'); T.tsync()
    w3_tread(0, n_a)
    vM0, vH0, vM1, vH1 = 44, 45, 46, 47
    p(f'''
    s_lshr_b32 s{sT}, s{sJ}, 2
    s_add_u32 s{sT}, s{sT}, 1
    s_sub_u32 s{sT+1}, 0, s{sT}
    s_and_b32 s{sT+2}, s{sJ}, 2
    s_cmp_eq_u32 s{sT+2}, 0
    s_cselect_b32 s{sT}, s{sT}, s{sT+1}
    s_mov_b32 s{sL+3}, {CS + W_HALO:#x}
    s_cselect_b32 s{sL+3}, s{sL+3}, {(W_HALO - CS) & 0xffffffff:#x}
    s_add_u32 s{sL+3}, s{sL+3}, s{sCB}
    v_lshrrev_b32 v10, 5, v0
    v_add_u32 v10, s{sL+2}, v10
    v_lshlrev_b32 v10, 10, v10
    v_and_b32 v11, 31, v0
    v_add_u32 v11, s{sT}, v11
    v_mov_b32 v13, {OOB:#x}
    ''')
    for pr, (m, h) in enumerate(((vM0, vH0), (vM1, vH1))):
        if pr: p('v_add_u32 v11, 32, v11')
        p(f'''
        v_and_b32 v12, 63, v11
        v_lshl_add_u32 v12, v12, 4, v10
        v_cmp_gt_u32 vcc, 64, v11
        v_cndmask_b32_e64 v{m}, v13, v12, vcc
        v_cndmask_b32_e64 v{h}, v12, v13, vcc
        ''')
    vAD = 2
    p(f'v_and_b32 v10, 15, v0\nv_lshrrev_b32 v11, 4, v0\nv_lshlrev_b32 v10, 4, v10\nv_lshl_add_u32 v{vAD}, v11, 10, v10\nv_add_u32 v3, {ROWA}, v10')
    T.ts('w2_done')
    T.bar(); T.bar()
    assert n_a <= 8
    vACC, vFR3 = 176, 160
    gemm_kmajor(T, 16, W1R, vACC, vFR3, [vAD])
    T.ts('p3_mm')
    T.bar()
    p(f's_mov_b32 s{sT+4}, {fbits(K2)}\ns_mov_b32 s{sT+5}, {fbits(K1)}')
    for t in range(4): p(f'ds_read_b128 {v(vFR3+4*t,4)}, v3 offset:{t*256}')
    p('s_waitcnt lgkmcnt(0)')
    for t in range(4):
        a = vACC + 4*t; c = vFR3 + 4*t
        for h in (0, 2): p(f'v_pk_mul_f32 {v(a+h,2)}, {v(a+h,2)}, {v(c,2)} op_sel_hi:[1,0]')
        for h in (0, 2): p(f'v_pk_fma_f32 {v(a+h,2)}, {v(vG1+h,2)}, {v(c,2)}, {v(a+h,2)} op_sel:[0,1,0] op_sel_hi:[1,1,1]')
        for h in (0, 2): p(f'v_pk_fma_f32 {v(a+h,2)}, {v(vS1+h,2)}, {v(c+2,2)}, {v(a+h,2)} op_sel_hi:[1,0,1]')
        for h in (0, 2): p(f'v_pk_fma_f32 {v(a+h,2)}, {v(vC1+h,2)}, {v(c+2,2)}, {v(a+h,2)} op_sel:[0,1,0] op_sel_hi:[1,1,1]')
        o = 12 + 4*(t >> 1) + 2*(t & 1)
        gelu_pairs(p, a, 56, o)
        if t & 1:
            ob = 12 + 4*(t >> 1)
            m, h = (vM0, vH0) if t == 1 else (vM1, vH1)
            p(f'v_permlane16_swap_b32 v{ob}, v{ob+2}\nv_permlane16_swap_b32 v{ob+1}, v{ob+3}\ns_add_u32 s{sT}, s{sCB}, {W_HB:#x}')
            p(f'buffer_store_dwordx4 {v(ob,4)}, v{h}, {srd(SWS)}, s{sL+3} offen sc1')
            T.store([f'buffer_store_dwordx4 {v(ob,4)}, v{m}, {srd(SWS)}, s{sT} offen'])
    T.ts('p3_done')
    for c in range(4):
        p(f'''
        s_add_u32 s{sT}, s{sQC}, {c}
        s_and_b32 s{sT}, s{sT}, 3
        s_lshr_b32 s{sT+1}, s{sT}, 1
        s_lshl_b32 s{sT+1}, 2, s{sT+1}
        s_sub_u32 s{sT+1}, s{sT+1}, 1
        s_brev_b32 s{sT+2}, s{sT+1}
        s_and_b32 s{sT}, s{sT}, 1
        s_cmp_eq_u32 s{sT}, 0
        s_cselect_b32 s{sM+6}, s{sT+1}, 0
        s_cselect_b32 s{sM+7}, 0, s{sT+2}
        s_cselect_b32 s{sT+1}, 0, 31
        s_cmp_eq_u32 s{sR}, s{sT+1}
        s_mov_b32 s{sT+1}, {OOB:#x}
        s_cselect_b32 s{sT+1}, s{sT+1}, {W_HALO - W_HB:#x}
        v_add_u32 v10, s{sT+1}, v{vLIN}
        v_cndmask_b32 v{20+c}, v{vLIN}, v10, s[{sM+6}:{sM+7}]
        ''')
    publish_and_poll(T, 3, vL, 10, halo=True)
    toks = adma_chunks(T, W_HB, [20, 21, 22, 23])
    for c in range(4):
        p.wait_vm(toks[c]); T.bar()
    T.ts('a4_done')
    w3_tread(n_a, n_b)
    T.tsync()
    mk_srd(p, SW, P_W3, 512 * 2752)
    w3_koff(p, n_a + n_b)
    for c in range(n_c): w3_issue(p, vA3, PARK + c*12288)
    vU, vU2 = 4, 2
    p(f's_min_u32 s{sT+6}, s{sJ}, 3\ns_mul_i32 s{sT+7}, s{sJ}, 5\ns_add_u32 s{sT+6}, s{sT+6}, s{sT+7}\ns_lshl_b32 s{sT+6}, s{sT+6}, 2\ns_lshl_b32 s{sT+7}, s{sW}, 1\ns_add_u32 s{sT+6}, s{sT+6}, s{sT+7}')
    pub_addr(p, vU, vL, 10, sT + 6)
    p(f'''
    s_cmp_lt_u32 s{sJ}, 3
    s_cselect_b32 s{sT+6}, 4, 2
    s_cmp_lt_u32 s{sW}, s{sT+6}
    s_cselect_b32 s{sT+6}, 0, {OOB:#x}
    v_or_b32 v{vU2}, s{sT+6}, v{vU}
    v_add_u32 v3, {ROW3 - ROWA}, v3
    ''')
    p('s_waitcnt vmcnt(0)'); T.tsync()
    w3_tread(n_a + n_b, n_c)
    T.ts('w4_done')
    T.bar(); T.bar()
    vA5, vPK, vF5, vRC, TP = 6, 18, 44, 56, (30, 60)
    for t in range(4):
        if t == 0: T.bar()
        tk = {}
        def rd(j):
            p(f'ds_read_b128 {v(vF5+4*(j%3),4)}, v{vLIN} offset:{t*16384 + j*1024}'); tk[j] = p.lg
        for j in range(2): rd(j)
        for j in range(16):
            if j + 2 < 16: rd(j + 2)
            p.wait_lg(tk[j])
            for s in range(3):
                p(f'v_mfma_f32_16x16x32_bf16 {v(vA5+4*s,4)}, {v(WR+12*j+4*s,4)}, {v(vF5+4*(j%3),4)}, {"0" if j == 0 else v(vA5+4*s,4)}')
        if t == 0:
            T.bar(); T.bar(); T.bar(); T.bar()
        p(f'ds_read_b128 {v(vRC,4)}, v3 offset:{t*256}\ns_waitcnt lgkmcnt(0)')
        for s in range(3):
            a = vA5 + 4*s
            H = ((0, TP[0]), (2, TP[1]))
            for h, x in H: p(f'v_pk_fma_f32 {v(a+h,2)}, {v(vC3+4*s+h,2)}, {v(vRC,2)}, {v(a+h,2)} op_sel_hi:[1,0,1]')
            for h, x in H: p(f'v_pk_mul_f32 {v(x,2)}, {v(a+h,2)}, {v(a+h,2)}')
            for h, x in H: p(f'v_pk_fma_f32 {v(x,2)}, {v(x,2)}, {v(vRC+2,2)}, {v(vRC,2)} op_sel:[0,0,1] op_sel_hi:[1,0,1]')
            for h, x in H: p(f'v_pk_mul_f32 {v(x,2)}, {v(x,2)}, {v(a+h,2)}')
            for h, x in H: p(f'v_exp_f32 v{x}, v{x}\nv_exp_f32 v{x+1}, v{x+1}')
            for h, x in H: p(f'v_pk_fma_f32 {v(x,2)}, {v(x,2)}, {v(vRC+2,2)}, {v(vRC+2,2)} op_sel:[0,1,1] op_sel_hi:[1,1,1]')
            for h, x in H: p(f'v_rcp_f32 v{x}, v{x}\nv_rcp_f32 v{x+1}, v{x+1}')
            for h, x in H: p(f'v_pk_mul_f32 {v(x,2)}, {v(x,2)}, {v(a+h,2)}')
            o = vPK + 4*s + 2*(t & 1)
            p(f'v_cvt_pk_bf16_f32 v{o}, v{TP[0]}, v{TP[0]+1}\nv_cvt_pk_bf16_f32 v{o+1}, v{TP[1]}, v{TP[1]+1}')
        if t & 1:
            for s in range(3):
                ob = vPK + 4*s
                p(f'v_permlane16_swap_b32 v{ob}, v{ob+2}\nv_permlane16_swap_b32 v{ob+1}, v{ob+3}\ns_add_u32 s{sT+s}, s{sCB}, {W_U + s*8192:#x}')
            T.store([f'buffer_store_dwordx4 {v(vPK+4*s,4)}, v{vU2 if s == 2 else vU}, {srd(SWS)}, s{sT+s} offen offset:{(t>>1)*512}' for s in range(3)])
    T.ts('p5_done')
    publish_and_poll(T, 5, vL, 6)
    p(f's_mul_i32 s{sT+1}, s{sQC}, 11\ns_add_u32 s{sT+1}, s{sT+1}, s{sW}\ns_add_u32 s{sT+3}, s{sCB}, {W_U:#x}')
    toks = {}
    def u_issue(c):
        p(f'''
        s_cmp_ge_u32 s{sT+1}, 43
        s_cselect_b32 s{sT+2}, 43, 0
        s_sub_u32 s{sT+1}, s{sT+1}, s{sT+2}
        s_lshl_b32 s{sT}, s{sT+1}, 12
        s_add_u32 s{sT}, s{sT}, s{sT+3}
        s_add_u32 s{sT+1}, s{sT+1}, 4
        s_add_u32 m0, s{sW4K}, {(c % 9)*16384}
        ''')
        for i in range(4):
            p(f'buffer_load_dwordx4 v{vLIN}, {srd(SWS)}, s{sT} offen offset:{i*1024} sc1 lds')
        toks[c] = p.vm
    for c in range(3): u_issue(c)
    for c in range(11):
        p.wait_vm(toks[c]); T.bar()
        if c + 3 < 11: u_issue(c + 3)
    T.ts('a6_done')
    return T

def unpack8(p, dst, src):
    for k in range(4):
        p(f'v_lshlrev_b32 v{dst+2*k}, 16, v{src+k}\nv_and_b32 v{dst+2*k+1}, 0xffff0000, v{src+k}')

def row_allreduce(p, regs):
    for sh in (8, 4, 2, 1):
        for r in regs:
            p(f'v_add_f32_dpp v{r}, v{r}, v{r} row_ror:{sh} row_mask:0xf bank_mask:0xf')

def small_w_ring(T, cfg, ptr, nk, rot_expr, vWA, vTR, dst, park=False, base=WST, nslots=4):
    p = T.p
    mk_srd(p, SW, ptr, nk * 32 * 1024)
    p(rot_expr)
    nch = (nk + 3) // 4
    def issue(c, slot):
        for k in range(min(4, nk - 4*c)):
            p(f's_add_u32 m0, s{sW1K}, {base + slot*16384 + k*4096}\nbuffer_load_dwordx4 v{vWA}, {srd(SW)}, s{sKOFF} offen lds')
            koff_next(p, 32768, nk)
    def tread(c, slot):
        for k in range(min(4, nk - 4*c)):
            o = slot*16384 + k*4096
            for h in range(2):
                p(f'ds_read_b64_tr_b16 {v(dst + 4*(4*c+k) + 2*h, 2)}, v{vTR[o >> 16]} offset:{(o & 0xffff) + h*512}')
    return nch, issue, tread

def team_b(cfg):
    vL = 0
    T = Team(cfg, 'B', vTS=15, vFA=13, vFB=14, vFT=8)
    p = T.p
    NB = 96
    vLIN = 1
    mk_srd(p, SA, P_X, 2048 * 1024)
    p(f'''
    v_lshlrev_b32 v{vLIN}, 4, v0
    s_lshl_b32 s{sT}, s{sR}, 6
    s_lshl_b32 s{sT+1}, s{sW}, 2
    s_add_u32 s{sT}, s{sT}, s{sT+1}
    s_sub_u32 s{sT}, s{sT}, 16
    s_lshl_b32 s{sT}, s{sT}, 10
    v_add_u32 v2, s{sT}, v{vLIN}
    ''')
    tokx = []
    for t in range(5):
        for i in range(4):
            n = NB + (4*t + i)*8
            p(f'buffer_load_dwordx4 {v(n+4,4)}, v2, {srd(SA)}, 0 offen offset:{i*1024}')
        tokx.append(p.vm)
        if t < 4: p('v_add_u32 v2, 0x4000, v2')
    p(f'''
    v_mov_b32 v{T.vFB}, {WF + 16}
    s_lshl_b32 s{sT}, s{sW}, 2
    v_add_u32 v{T.vFA}, s{sT}, v{T.vFB}
    v_mov_b32 v3, 0
    v_subrev_u32 v4, 16, v{T.vFA}
    ds_write_b32 v{T.vFA}, v3
    ds_write_b32 v4, v3
    s_waitcnt lgkmcnt(0)
    ''')
    p(f's_waitcnt lgkmcnt(0)\ns_mul_i32 s{sTAG}, s{sTAG}, 1664525\ns_add_u32 s{sTAG}, s{sTAG}, 1013904223')
    T.bar()
    T.ts('bar0')
    p(f'''
    v_and_b32 v3, 7, v0
    v_lshlrev_b32 v3, 4, v3
    s_lshl_b32 s{sT}, s{sW}, 9
    s_add_u32 s{sT}, s{sT}, {XS}
    v_add_u32 v3, s{sT}, v3
    s_lshl_b32 s{sT}, s{sJ}, 3
    s_mov_b64 s[{sM}:{sM+1}], 0xff
    s_lshl_b64 s[{sM}:{sM+1}], s[{sM}:{sM+1}], s{sT}
    v_mov_b32 v4, 0x3f803f80
    s_mov_b32 s{sT+4}, {fbits(1/512)}
    s_mov_b32 s{sT+5}, {fbits(1e-5)}
    ''')
    for t in range(5):
        p.wait_vm(tokx[t])
        if t == 0: T.ts('x0')
        S, Q = 16, 20
        for k in range(4):
            for i in range(4):
                x = NB + (4*t + i)*8 + 4 + k
                p(f'v_dot2_f32_bf16 v{S+i}, v{x}, v4, {"0" if k == 0 else f"v{S+i}"}')
                p(f'v_dot2_f32_bf16 v{Q+i}, v{x}, v{x}, {"0" if k == 0 else f"v{Q+i}"}')
        if t > 0:
            p(f's_mov_b64 exec, s[{sM}:{sM+1}]')
            for i in range(4):
                p(f'ds_write_b128 v3, {v(NB + (4*t+i)*8 + 4, 4)} offset:{(t-1)*2048 + i*128}')
            p('s_mov_b64 exec, -1')
        xreduce4(p, S, S+1, S+2, S+3); xreduce4(p, Q, Q+1, Q+2, Q+3)
        row_allreduce(p, (S, Q))
        p(f'''
        v_mul_f32 v{S}, s{sT+4}, v{S}
        v_mul_f32 v{S+1}, v{S}, v{S}
        v_fma_f32 v{Q}, v{Q}, s{sT+4}, -v{S+1}
        v_max_f32 v{Q}, 0, v{Q}
        v_add_f32 v{Q}, s{sT+5}, v{Q}
        v_rsq_f32 v{Q}, v{Q}
        v_mul_f32 v{S}, v{S}, v{Q}
        v_sub_f32 v{S}, 0, v{S}
        ''')
        for i in range(4):
            p(f'v_readlane_b32 s{sL+2*i}, v{Q}, {16*i}\nv_readlane_b32 s{sL+2*i+1}, v{S}, {16*i}')
        if t > 0: p('s_waitcnt lgkmcnt(0)')
        for i in range(4):
            n = NB + (4*t + i)*8
            unpack8(p, n, n + 4)
            for h in range(0, 8, 2):
                p(f'v_pk_fma_f32 {v(n+h,2)}, {v(n+h,2)}, s[{sL+2*i}:{sL+2*i+1}], s[{sL+2*i}:{sL+2*i+1}] op_sel:[0,0,1] op_sel_hi:[1,0,1]')
    T.ts('ln_done')
    L = p.label('m2')
    p(f's_cmp_lg_u32 s{sW}, 0\ns_cbranch_scc1 {L}')
    p(f'''
    s_lshl_b32 s{sT}, s{sJ}, 12
    s_add_u32 s{sT}, s{sT}, s{sCB}
    s_add_u32 s{sT}, s{sT}, {W_MODP:#x}
    s_mov_b32 s{sM+2}, 0x3f3f3f3f
    s_mov_b32 s{sM+3}, 0x3f3f3f3f
    ''')
    T.poll([f'buffer_load_dwordx4 {v(16+4*i,4)}, v{vLIN}, {srd(SWS)}, s{sT} offen offset:{i*1024} sc1' for i in range(4)],
           [f'v_xor_b32 v5, s{sTAG}, v18', f'v_xor_b32 v6, s{sTAG}, v22', f'v_xor_b32 v7, s{sTAG}, v26', f'v_xor_b32 v32, s{sTAG}, v30',
            'v_or3_b32 v5, v5, v6, v7', 'v_or_b32 v5, v5, v32', 'v_cmp_ne_u32 vcc, 0, v5', f's_and_b64 vcc, vcc, s[{sM+2}:{sM+3}]'])
    p(f'''
    v_xor_b32 v5, s{sXCC}, v19
    v_xor_b32 v6, s{sXCC}, v23
    v_xor_b32 v7, s{sXCC}, v27
    v_xor_b32 v32, s{sXCC}, v31
    v_or3_b32 v5, v5, v6, v7
    v_or_b32 v5, v5, v32
    v_cmp_ne_u32 vcc, 0, v5
    v_pk_add_f32 v[16:17], v[16:17], v[20:21]
    v_pk_add_f32 v[24:25], v[24:25], v[28:29]
    s_and_b64 vcc, vcc, s[{sM+2}:{sM+3}]
    s_cselect_b32 s{sT+1}, 0, {0 if cfg.force_slow else 1}
    v_pk_add_f32 v[16:17], v[16:17], v[24:25]
    v_mov_b32 v5, s{sT+1}
    v_mov_b32 v6, {FASTW}
    ds_write_b32 v6, v5
    v_add_f32_dpp v16, v16, v16 row_ror:8 row_mask:0xf bank_mask:0xf
    v_add_f32_dpp v17, v17, v17 row_ror:8 row_mask:0xf bank_mask:0xf
    v_mov_b32 v18, v16
    v_mov_b32 v19, v17
    v_permlane16_swap_b32 v16, v18
    v_permlane16_swap_b32 v17, v19
    v_pk_add_f32 v[16:17], v[16:17], v[18:19]
    v_mov_b32 v18, v16
    v_mov_b32 v19, v17
    v_permlane32_swap_b32 v16, v18
    v_permlane32_swap_b32 v17, v19
    v_pk_add_f32 v[16:17], v[16:17], v[18:19]
    v_cvt_pk_bf16_f32 v16, v16, v17
    v_mov_b32 v17, s{sTAG}
    v_lshlrev_b32 v5, 3, v0
    v_mov_b32 v6, {OOB:#x}
    v_cmp_gt_u32 vcc, 6, v0
    v_cndmask_b32_e64 v5, v6, v5, vcc
    s_lshl_b32 s{sT}, s{sR}, 3
    s_add_u32 s{sT}, s{sT}, s{sJ}
    s_mul_i32 s{sT}, s{sT}, 48
    buffer_store_dwordx2 v[16:17], v5, {srd(SWS)}, s{sT} offen sc1
    {L}:
    ''')
    T.ts('mod2')
    p(f's_mul_i32 s{sT}, s{sW}, 3072')
    T.poll([f'buffer_load_dwordx4 {v(16+4*i,4)}, v{vLIN}, {srd(SWS)}, s{sT} offen offset:{i*1024} sc1' for i in range(3)],
           [f'v_xor_b32 v{32+i}, s{sTAG}, v{17+2*i}' for i in range(6)] +
           ['v_or3_b32 v32, v32, v33, v34', 'v_or3_b32 v32, v32, v35, v36', 'v_or_b32 v32, v32, v37', 'v_cmp_ne_u32 vcc, 0, v32'])
    p(f's_mul_i32 s{sT}, s{sW}, 1536\ns_add_u32 s{sT}, s{sT}, {MODL}\nv_lshlrev_b32 v5, 3, v0\nv_add_u32 v5, s{sT}, v5')
    for i in range(3):
        p(f'ds_write2_b32 v5, v{16+4*i}, v{18+4*i} offset0:{i*128} offset1:{i*128+1}') if i < 2 else p(f'v_add_u32 v5, 1024, v5\nds_write2_b32 v5, v24, v26 offset0:0 offset1:1')
    p('s_waitcnt lgkmcnt(0)'); T.tsync()
    T.ts('modf')
    L = p.label('ep')
    p(f's_or_b32 s{sT}, s2, s{sW}\ns_cmp_lg_u32 s{sT}, 0\ns_cbranch_scc1 {L}\nv_mov_b32 v5, {EPOCH}\nv_mov_b32 v6, s{sTAG}\nbuffer_store_dword v6, v5, {srd(SWS)}, 0 offen sc1\n{L}:')
    vZ, vH, vGB, vGA, vG, vSB = 48, 64, 80, 84, 88, 92
    p(f'''
    v_add_u32 v5, {MODL}, v{vLIN}
    ds_read_b128 v[20:23], v5
    ds_read_b128 v[28:31], v5 offset:1024
    v_and_b32 v6, 15, v0
    v_lshrrev_b32 v7, 4, v0
    v_lshlrev_b32 v6, 7, v6
    v_lshl_add_u32 v6, v7, 3, v6
    s_lshl_b32 s{sT}, s{sW}, 5
    s_add_u32 s{sT}, s{sT}, {XS}
    v_add_u32 v6, s{sT}, v6
    ''')
    for t in range(4): p(f'ds_read_b64 {v(vH+2*t,2)}, v6 offset:{t*2048}')
    p(f'''
    s_lshl_b32 s{sT}, s{sQC}, 4
    v_subrev_u32 v6, s{sT}, v0
    v_and_b32 v6, 63, v6
    s_and_b32 s{sT}, s{sW}, 1
    s_lshl_b32 s{sT}, s{sT}, 2
    v_xor_b32 v7, s{sT}, v6
    v_and_b32 v7, 7, v7
    v_lshlrev_b32 v7, 4, v7
    v_lshl_add_u32 v32, v6, 8, v7
    s_lshr_b32 s{sT}, s{sW}, 1
    s_lshl_b32 s{sT}, s{sT}, 7
    v_add_u32 v32, s{sT}, v32
    v_xor_b32 v33, 16, v32
    v_xor_b32 v34, 32, v32
    v_xor_b32 v35, 48, v32
    v_lshlrev_b32 v12, 4, v6
    s_waitcnt lgkmcnt(0)
    ''')
    unpack8(p, 16, 20); unpack8(p, 24, 28)
    for h in range(0, 8, 2): p(f'v_pk_add_f32 {v(24+h,2)}, {v(24+h,2)}, 1.0 op_sel_hi:[1,0]')
    for k in range(4): p(f'v_cvt_pk_bf16_f32 v{36+k}, v{24+2*k}, v{25+2*k}')
    unpack8(p, 24, 36)
    for t in range(5):
        if t == 4:
            for i in range(4): p(f'v_add_u32 v{32+i}, 0x10000, v{32+i}')
        for i in range(4):
            n = NB + (4*t + i)*8
            for h in range(0, 8, 2): p(f'v_pk_fma_f32 {v(n+h,2)}, {v(n+h,2)}, {v(24+h,2)}, {v(16+h,2)}')
            for k in range(4): p(f'v_cvt_pk_bf16_f32 v{n+k}, v{n+2*k}, v{n+2*k+1}')
            p(f'ds_write_b128 v{32+i}, {v(n,4)} offset:{(t % 4)*16384}')
    for t in range(4):
        p(f'v_lshlrev_b32 v{vZ+4*t}, 16, v{vH+2*t}\nv_and_b32 v{vZ+4*t+1}, 0xffff0000, v{vH+2*t}\nv_lshlrev_b32 v{vZ+4*t+2}, 16, v{vH+2*t+1}\nv_and_b32 v{vZ+4*t+3}, 0xffff0000, v{vH+2*t+1}')
    p('s_waitcnt lgkmcnt(0)')
    T.ts('h0w')
    T.bar()
    T.ts('h0')
    WOR, W2R, W4R = 128, 192, 84
    vWA, vTR, vTR2 = 2, 3, 4
    p(f's_lshl_b32 s{sT+7}, s{sJ}, 7')
    w_src_addr(p, vWA, vL, 5, 1024, sT + 7)
    tr_addr(p, vTR, vL, 5, 1024, WST)
    rot = f's_lshl_b32 s{sKOFF}, s{sQC}, 17'
    def extras():
        p(f'v_mov_b32 v5, {FASTW}\nds_read_b32 v5, v5')
        p(f'''
        v_add_u32 v6, {MODL}, v{vLIN}
        ds_read_b128 v[20:23], v6 offset:3072
        ds_read_b128 v[28:31], v6 offset:4096
        v_lshrrev_b32 v7, 4, v0
        v_lshlrev_b32 v7, 3, v7
        s_lshl_b32 s{sT}, s{sJ}, 7
        s_lshl_b32 s{sT+1}, s{sW}, 5
        s_add_u32 s{sT}, s{sT}, s{sT+1}
        s_add_u32 s{sT}, s{sT}, {MODL}
        v_add_u32 v7, s{sT}, v7
        ds_read_b64 v[32:33], v7 offset:2048
        ds_read_b64 v[34:35], v7 offset:3072
        ds_read_b64 v[36:37], v7 offset:4096
        ds_read_b64 v[38:39], v7 offset:5120
        s_waitcnt lgkmcnt(0)
        v_readfirstlane_b32 s{sFAST}, v5
        ''')
        for dst, src in ((vGA, 32), (vSB, 34), (vG, 36), (vGB, 38)):
            p(f'v_lshlrev_b32 v{dst}, 16, v{src}\nv_and_b32 v{dst+1}, 0xffff0000, v{src}\nv_lshlrev_b32 v{dst+2}, 16, v{src+1}\nv_and_b32 v{dst+3}, 0xffff0000, v{src+1}')
        for i in range(4): p(f'v_add_f32 v{vG+i}, 1.0, v{vG+i}')
        p(f'v_cvt_pk_bf16_f32 v36, v{vG}, v{vG+1}\nv_cvt_pk_bf16_f32 v37, v{vG+2}, v{vG+3}')
        p(f'v_lshlrev_b32 v{vG}, 16, v36\nv_and_b32 v{vG+1}, 0xffff0000, v36\nv_lshlrev_b32 v{vG+2}, 16, v37\nv_and_b32 v{vG+3}, 0xffff0000, v37')
        unpack8(p, 32, 28)
        for i in range(8): p(f'v_add_f32 v{32+i}, 1.0, v{32+i}')
        for k in range(4): p(f'v_cvt_pk_bf16_f32 v{28+k}, v{32+2*k}, v{33+2*k}')
        for k in range(4): p(f'v_mov_b32 v{24+k}, 0x3f803f80')
        p(f'v_add_u32 v12, {VEC3}, v12\nds_write_b128 v12, v[28:31]\nds_write_b128 v12, v[20:23] offset:1024\nds_write_b128 v12, v[24:27] offset:2048')
        p(f'v_mov_b32 v16, 0\nv_mov_b32 v17, 0\nv_mov_b32 v18, 0\nv_mov_b32 v19, 0\nv_add_u32 v6, {SACC2}, v{vLIN}\nds_write_b128 v6, v[16:19]\nds_write_b128 v6, v[16:19] offset:1024')
        pairs = ((28, 24), (28, 28), (28, 20), (20, 24), (20, 20))
        for k in range(4):
            for q, (a, b) in enumerate(pairs):
                p(f'v_dot2_f32_bf16 v{32+q}, v{a+k}, v{b+k}, {"0" if k == 0 else f"v{32+q}"}')
        row_allreduce(p, range(32, 37))
        for q in range(5):
            p(f'v_mov_b32 v38, v{32+q}\nv_permlane16_swap_b32 v{32+q}, v38\nv_add_f32 v{32+q}, v{32+q}, v38\nv_mov_b32 v38, v{32+q}\nv_permlane32_swap_b32 v{32+q}, v38\nv_add_f32 v{32+q}, v{32+q}, v38\nv_mul_f32 v{32+q}, {fbits(1/512)}, v{32+q}\nv_readfirstlane_b32 s{sL+8+q}, v{32+q}')
    def issue(c, slot):
        if c % 4 == 0:
            mk_srd(p, SW, (P_WO, P_W2, P_W1)[c // 4], 512 * 1024); p(rot)
        for k in range(4):
            p(f's_add_u32 m0, s{sW1K}, {WST + slot*16384 + k*4096}\nbuffer_load_dwordx4 v{vWA}, {srd(SW)}, s{sKOFF} offen lds')
            koff_next(p, 32768, 16)
    def tread(c, slot):
        dst = (WOR, W2R)[c // 4] + 16*(c % 4)
        for k in range(4):
            for h in range(2):
                p(f'ds_read_b64_tr_b16 {v(dst + 4*k + 2*h, 2)}, v{vTR} offset:{slot*16384 + k*4096 + h*512}')
    tok = {}
    dep = cfg.ring_depth
    for c in range(dep): issue(c, c % 4); tok[c] = p.vm
    extras()
    for c in range(9):
        if c < 8: p.wait_vm(tok[c])
        p('s_waitcnt lgkmcnt(0)'); T.tsync()
        for cc in range(c + dep, (c + dep + 1) if c < 8 else 12):
            if cc < 12: issue(cc, cc % 4); tok[cc] = p.vm
        if c < 8: tread(c, c % 4)
    vAD, vST, vSTX = 5, 6, 7
    vFR, vACC = 16, 32
    p(f'v_and_b32 v16, 15, v0\nv_lshrrev_b32 v17, 4, v0\nv_lshlrev_b32 v16, 4, v16\nv_lshl_add_u32 v{vAD}, v17, 10, v16')
    p(f's_lshl_b32 s{sT}, s{sJ}, 3\ns_lshl_b32 s{sT+1}, s{sW}, 1\ns_add_u32 s{sL+2}, s{sT}, s{sT+1}')
    pub_addr(p, vST, vL, 16, sL + 2)
    pub_addr(p, vSTX, vL, 16, sL + 2, tilemajor=True)
    p(f'v_lshlrev_b32 v12, 2, v0\nv_add_u32 v12, {SACC2}, v12')
    p('s_waitcnt vmcnt(0)')
    T.ts('w1_done')
    T.bar(); T.bar()
    gemm_kmajor(T, 16, WOR, vACC, vFR, [vAD])
    T.ts('p2_mm')
    X = 96
    for t in range(4):
        for h in (0, 2): p(f'v_pk_fma_f32 {v(vZ+4*t+h,2)}, {v(vACC+4*t+h,2)}, {v(vGA+h,2)}, {v(vZ+4*t+h,2)}')
    for t in range(4):
        for h in (0, 2): p(f'v_pk_mul_f32 {v(vACC+4*t+h,2)}, {v(vZ+4*t+h,2)}, {v(vG+h,2)}')
    for t in range(4):
        p(f'v_cvt_pk_bf16_f32 v{16+2*t}, v{vACC+4*t}, v{vACC+4*t+1}\nv_cvt_pk_bf16_f32 v{17+2*t}, v{vACC+4*t+2}, v{vACC+4*t+3}')
    p(f'v_permlane16_swap_b32 v16, v18\nv_permlane16_swap_b32 v17, v19\nv_permlane16_swap_b32 v20, v22\nv_permlane16_swap_b32 v21, v23\ns_add_u32 s{sT}, s{sCB}, {W_Y:#x}')
    T.store([f'buffer_store_dwordx4 v[16:19], v{vST}, {srd(SWS)}, s{sT} offen', f'buffer_store_dwordx4 v[20:23], v{vST}, {srd(SWS)}, s{sT} offen offset:512'])
    def stat(q, a_of, b_of, off):
        for t in range(4):
            x = X + 2*t; a = a_of(t)
            if b_of is None:
                p(f'v_pk_add_f32 {v(x,2)}, {v(a,2)}, {v(a+2,2)}')
            else:
                b = b_of(t)
                p(f'v_pk_mul_f32 {v(x,2)}, {v(a,2)}, {v(b,2)}\nv_pk_fma_f32 {v(x,2)}, {v(a+2,2)}, {v(b+2,2)}, {v(x,2)}')
        for t in range(4): p(f'v_add_f32 v{X+8+4*q+t}, v{X+2*t}, v{X+2*t+1}')
    zt = lambda t: vZ + 4*t
    yt = lambda t: vACC + 4*t
    for q, (a, b) in enumerate(((zt, None), (zt, zt), (yt, None), (yt, yt), (yt, lambda t: vG), (yt, lambda t: vSB))):
        stat(q, a, b, 0)
    for q in range(6):
        r0 = X + 8 + 4*q
        xreduce4(p, r0, r0+1, r0+2, r0+3)
        p(f'ds_add_f32 v12, v{r0} offset:{q*256}')
    T.ts('p2_done')
    def pub_st2():
        p('ds_read_b32 v16, v12\nds_read_b32 v17, v12 offset:256\nds_read_b32 v18, v12 offset:512\nds_read_b32 v20, v12 offset:768\nds_read_b32 v21, v12 offset:1024\nds_read_b32 v22, v12 offset:1280')
        p(f'v_mov_b32 v19, s{sTAG}\nv_mov_b32 v23, s{sTAG}\ns_lshl_b32 s{sT}, s{sJ}, 11\ns_add_u32 s{sT}, s{sT}, s{sCB}\ns_add_u32 s{sT}, s{sT}, {W_ST2:#x}\ns_waitcnt lgkmcnt(0)')
        T.store([f'buffer_store_dwordx4 v[16:19], v{vLIN}, {srd(SWS)}, s{sT} offen', f'buffer_store_dwordx4 v[20:23], v{vLIN}, {srd(SWS)}, s{sT} offen offset:1024'])
    publish_and_poll(T, 2, vL, 24, extra_w1=pub_st2)
    toks = adma_chunks(T, W_Y, [vLIN]*4)
    for c in range(4):
        p.wait_vm(toks[c]); T.bar()
    T.ts('a3_done')
    L = p.label('rs')
    p(f's_cmp_lg_u32 s{sW}, 3\ns_cbranch_scc1 {L}')
    G = 128
    lds = []
    for m in range(4): p(f's_add_u32 s{sT+m}, s{sCB}, {W_ST2 + m*4096:#x}')
    for i in range(16): lds.append(f'buffer_load_dwordx4 {v(G+4*i,4)}, v{vLIN}, {srd(SWS)}, s{sT + i//4} offen offset:{(i%4)*1024} sc1')
    chk = [f'v_xor_b32 v{X+i}, s{sTAG}, v{G+4*i+3}' for i in range(16)]
    chk += [f'v_or3_b32 v{X}, v{X}, v{X+i}, v{X+i+1}' for i in range(1, 15, 2)] + [f'v_or_b32 v{X}, v{X}, v{X+15}', f'v_cmp_ne_u32 vcc, 0, v{X}']
    T.poll(lds, chk)
    for m in range(1, 8):
        for k in (0, 1, 2, 4, 5, 6): p(f'v_add_f32 v{G+k}, v{G+k}, v{G+8*m+k}')
    cG, cGG, cGS, cS, cSS = (f's{sL+8+q}' for q in range(5))
    for k in (0, 1, 2, 4, 5, 6): p(f'v_mul_f32 v{G+k}, {fbits(1/512)}, v{G+k}')
    mu, ezz, ey, eyy, eyg, eys = G, G+1, G+2, G+4, G+5, G+6
    p(f'''
    v_fma_f32 v{X}, -v{mu}, v{mu}, v{ezz}
    v_max_f32 v{X}, 0, v{X}
    v_add_f32 v{X}, {fbits(1e-5)}, v{X}
    v_rsq_f32 v{X}, v{X}
    v_fma_f32 v{ey}, -v{mu}, {cG}, v{ey}
    v_fma_f32 v{eys}, -v{mu}, {cGS}, v{eys}
    v_mul_f32 v{X+1}, {cGG}, v{mu}
    v_fma_f32 v{X+1}, v{eyg}, -2.0, v{X+1}
    v_fma_f32 v{eyy}, v{X+1}, v{mu}, v{eyy}
    v_fma_f32 v{ey}, v{ey}, v{X}, {cS}
    v_mul_f32 v{eyy}, v{eyy}, v{X}
    v_fma_f32 v{eyy}, v{eys}, 2.0, v{eyy}
    v_fma_f32 v{eyy}, v{eyy}, v{X}, {cSS}
    v_fma_f32 v{eyy}, -v{ey}, v{ey}, v{eyy}
    v_max_f32 v{eyy}, 0, v{eyy}
    v_add_f32 v{eyy}, {fbits(1e-5)}, v{eyy}
    v_rsq_f32 v{X+6}, v{eyy}
    v_mul_f32 v{X+1}, v{mu}, v{X}
    v_sub_f32 v{X+1}, 0, v{X+1}
    v_mul_f32 v{X+4}, v{X+6}, v{X}
    v_mul_f32 v{X+5}, v{X+6}, v{X+1}
    v_mul_f32 v{X+7}, v{X+6}, v{ey}
    v_sub_f32 v{X+7}, 0, v{X+7}
    v_add_u32 v{X+8}, {ROWA}, v{vLIN}
    v_lshlrev_b32 v{X+9}, 3, v0
    v_add_u32 v{X+9}, {ROWH}, v{X+9}
    ds_write_b128 v{X+8}, {v(X+4,4)}
    ds_write_b64 v{X+9}, {v(X,2)}
    s_waitcnt lgkmcnt(0)
    {L}:
    ''')
    T.bar()
    T.ts('st3')
    n_a, n_b, n_c = cfg.w3split
    w3_setup(p, vL, 16, 20)
    w3_koff(p, n_a)
    for c in range(n_b): w3_issue(p, 20, PARK + c*12288)
    p(f'v_and_b32 v16, 15, v0\nv_lshlrev_b32 v16, 3, v16\nv_add_u32 v16, {ROWH}, v16')
    for t in range(4): p(f'ds_read_b64 {v(24+2*t,2)}, v16 offset:{t*128}')
    p('s_waitcnt lgkmcnt(0)')
    for t in range(4):
        for i in range(4):
            p(f'v_fma_f32 v{vH+4*t+i}, v{vZ+4*t+i}, v{24+2*t}, v{25+2*t}')
            p(f'v_fma_f32 v{vH+4*t+i}, v{vH+4*t+i}, v{vG+i}, v{vSB+i}')
    p('s_waitcnt vmcnt(0)')
    T.ts('w3_done')
    T.bar(); T.bar()
    gemm_kmajor(T, 16, W2R, vACC, vFR, [vAD])
    T.ts('p4_mm')
    for t in range(4):
        for h in (0, 2): p(f'v_pk_add_f32 {v(vH+4*t+h,2)}, {v(vH+4*t+h,2)}, {v(vACC+4*t+h,2)}')
    for t in range(4):
        p(f'v_cvt_pk_bf16_f32 v{16+2*t}, v{vH+4*t}, v{vH+4*t+1}\nv_cvt_pk_bf16_f32 v{17+2*t}, v{vH+4*t+2}, v{vH+4*t+3}')
    p(f'v_permlane16_swap_b32 v16, v18\nv_permlane16_swap_b32 v17, v19\nv_permlane16_swap_b32 v20, v22\nv_permlane16_swap_b32 v21, v23\ns_add_u32 s{sT}, s{sCB}, {W_X1:#x}\ns_add_u32 s{sT+1}, s{sCB}, {W_X1 + 32768:#x}')
    T.store([f'buffer_store_dwordx4 v[16:19], v{vSTX}, {srd(SWS)}, s{sT} offen', f'buffer_store_dwordx4 v[20:23], v{vSTX}, {srd(SWS)}, s{sT+1} offen'])
    ht = lambda t: vH + 4*t
    stat(0, ht, None, 0); stat(1, ht, ht, 0)
    for q in range(2):
        r0 = X + 8 + 4*q
        xreduce4(p, r0, r0+1, r0+2, r0+3)
        p(f'ds_add_f32 v12, v{r0} offset:{SACC4 - SACC2 + q*256}')
    T.ts('p4_done')
    def pub_st4():
        p(f'ds_read_b32 v16, v12 offset:{SACC4-SACC2}\nds_read_b32 v17, v12 offset:{SACC4-SACC2+256}')
        p(f'v_mov_b32 v18, s{sTAG}\nv_mov_b32 v19, s{sTAG}\ns_lshl_b32 s{sT}, s{sJ}, 10\ns_add_u32 s{sT}, s{sT}, s{sCB}\ns_add_u32 s{sT}, s{sT}, {W_ST4:#x}\ns_waitcnt lgkmcnt(0)')
        T.store([f'buffer_store_dwordx4 v[16:19], v{vLIN}, {srd(SWS)}, s{sT} offen'])
    publish_and_poll(T, 4, vL, 24, extra_w1=pub_st4)
    p(f's_add_u32 s{sT}, s{sW}, s{sQC}\ns_and_b32 s{sT}, s{sT}, 3\ns_lshl_b32 s{sT}, s{sT}, 12\ns_add_u32 s{sT}, s{sT}, s{sCB}\ns_add_u32 s{sT}, s{sT}, {W_X1:#x}')
    toks = []
    for c in range(4):
        p(f's_add_u32 m0, s{sW4K}, {c*16384}')
        if c: p(f's_add_u32 s{sT}, s{sT}, 16384')
        for i in range(4): p(f'buffer_load_dwordx4 v{vLIN}, {srd(SWS)}, s{sT} offen offset:{i*1024} sc1 lds')
        toks.append(p.vm)
    for c in range(4):
        p.wait_vm(toks[c]); T.bar()
        if c == 0:
            L = p.label('rs')
            p(f's_cmp_lg_u32 s{sW}, 3\ns_cbranch_scc1 {L}')
            vm0 = p.vm
            for m in range(2): p(f's_add_u32 s{sT+m}, s{sCB}, {W_ST4 + m*4096:#x}')
            lds = [f'buffer_load_dwordx4 {v(G+4*i,4)}, v{vLIN}, {srd(SWS)}, s{sT + i//4} offen offset:{(i%4)*1024} sc1' for i in range(8)]
            chk = [f'v_xor_b32 v{X+i}, s{sTAG}, v{G+4*i+3}' for i in range(8)]
            chk += [f'v_or3_b32 v{X}, v{X}, v{X+i}, v{X+i+1}' for i in range(1, 7, 2)] + [f'v_or_b32 v{X}, v{X}, v{X+7}', f'v_cmp_ne_u32 vcc, 0, v{X}']
            T.poll(lds, chk)
            p.vm = vm0
            for m in range(1, 8):
                for k in (0, 1): p(f'v_add_f32 v{G+k}, v{G+k}, v{G+4*m+k}')
            p(f'''
            v_mul_f32 v{X}, {fbits(-1/512)}, v{G}
            v_mul_f32 v{G+1}, {fbits(1/512)}, v{G+1}
            v_fma_f32 v{G+1}, -v{X}, v{X}, v{G+1}
            v_max_f32 v{G+1}, 0, v{G+1}
            v_add_f32 v{G+1}, {fbits(1e-5)}, v{G+1}
            v_rsq_f32 v{G}, v{G+1}
            v_sqrt_f32 v{X+3}, v{G+1}
            v_mul_f32 v{X+1}, {fbits(K1)}, v{G}
            v_mul_f32 v{X+2}, v{G}, v{G}
            v_mul_f32 v{X+2}, v{X+2}, v{G}
            v_mul_f32 v{X+2}, {fbits(K2)}, v{X+2}
            v_add_u32 v{X+8}, {ROW3}, v{vLIN}
            ds_write_b128 v{X+8}, {v(X,4)}
            s_waitcnt lgkmcnt(0)
            {L}:
            ''')
    T.bar()
    T.ts('a5_done')
    tr_addr(p, vTR, vL, 16, 1024, PARK)
    p(f'v_add_u32 v{vTR2}, 0x10000, v{vTR}')
    nch, issue4, tread4 = small_w_ring(T, cfg, P_W4, 43, f's_mul_i32 s{sKOFF}, s{sQC}, {11*32768}', vWA, [vTR, vTR2], W4R, base=PARK, nslots=5)
    ring(T, nch, issue4, tread4, 5, cfg.ring_depth)
    mk_srd(p, SA, P_OUT, 2048 * 1024)
    p(f'''
    v_add_u32 v6, 0x10000, v{vAD}
    v_add_u32 v7, 0x20000, v{vAD}
    v_and_b32 v2, 31, v0
    s_lshl_b32 s{sT}, s{sR}, 6
    v_add_u32 v2, s{sT}, v2
    v_lshlrev_b32 v2, 10, v2
    v_lshrrev_b32 v3, 5, v0
    v_add_u32 v3, s{sL+2}, v3
    v_lshl_add_u32 v2, v3, 4, v2
    s_mov_b32 s{sT+1}, 0x8000
    ''')
    T.ts('w5_done')
    T.bar(); T.bar()
    gemm_kmajor(T, 43, W4R, vACC, vFR, [vAD, 6, 7], slot_of=lambda c: c % 9)
    T.ts('p6_mm')
    for t in range(4):
        for h in (0, 2): p(f'v_pk_add_f32 {v(vH+4*t+h,2)}, {v(vH+4*t+h,2)}, {v(vACC+4*t+h,2)}')
    for t in range(4):
        for h in (0, 2): p(f'v_pk_fma_f32 {v(vH+4*t+h,2)}, {v(vH+4*t+h,2)}, {v(vGB+h,2)}, {v(vZ+4*t+h,2)}')
    for t in range(4):
        p(f'v_cvt_pk_bf16_f32 v{16+2*t}, v{vH+4*t}, v{vH+4*t+1}\nv_cvt_pk_bf16_f32 v{17+2*t}, v{vH+4*t+2}, v{vH+4*t+3}')
    p(f'v_permlane16_swap_b32 v16, v18\nv_permlane16_swap_b32 v17, v19\nv_permlane16_swap_b32 v20, v22\nv_permlane16_swap_b32 v21, v23')
    p(f'buffer_store_dwordx4 v[16:19], v2, {srd(SA)}, 0 offen\nbuffer_store_dwordx4 v[20:23], v2, {srd(SA)}, s{sT+1} offen')
    T.ts('end')
    return T

def build(cfg):
    A = team_a(cfg); B = team_b(cfg)
    assert A.nbar == B.nbar, (A.nbar, B.nbar)
    P = Prog()
    if cfg.ts:
        P(f's_memrealtime s[{sTS}:{sTS+1}]')
    P(f'''
    s_load_dwordx16 s[8:23], s[0:1], 0
    s_load_dwordx8 s[24:31], s[0:1], 64
    s_load_dwordx2 s[32:33], s[0:1], 96
    s_cmp_ge_u32 s2, 256
    s_cbranch_scc1 L_exit
    v_lshrrev_b32 v1, 6, v0
    v_and_b32 v0, 63, v0
    v_readfirstlane_b32 s3, v1
    s_getreg_b32 s{sXCC}, hwreg(HW_REG_XCC_ID)
    s_lshr_b32 s4, s2, 3
    s_and_b32 s{sJ}, s4, 7
    s_lshr_b32 s{sQC}, s4, 3
    s_and_b32 s5, s2, 7
    s_lshl_b32 s5, s5, 2
    s_add_u32 s{sR}, s5, s{sQC}
    s_add_u32 s{sCB}, s{sR}, 1
    s_lshl_b32 s{sCB}, s{sCB}, 20
    s_and_b32 s{sW}, s3, 3
    s_lshl_b32 s{sW1K}, s{sW}, 10
    s_lshl_b32 s{sW4K}, s{sW}, 12
    s_mov_b32 s{sBUD}, 200000
    s_mov_b32 s{sFAST}, 0
    s_cmp_lg_u32 s3, 7
    s_cbranch_scc1 L_nopf
    s_getpc_b64 s[{SB}:{SB+1}]
    L_pc:
    s_mov_b32 s{SB+2}, L_codeend-L_pc
    s_mov_b32 s{SB+3}, 0x20000
    s_lshl_b32 s4, s{sJ}, 13
    v_lshlrev_b32 v1, 7, v0
    buffer_load_dword v95, v1, {srd(SB)}, s4 offen
    L_nopf:
    s_waitcnt lgkmcnt(0)
    s_load_dword s{sTAG}, s[32:33], {EPOCH:#x}
    ''')
    mk_srd(P, SWS, P_WS, WS_BYTES)
    if cfg.ts:
        P(f'v_mov_b32 v15, s{sTS}\nv_mov_b32 v63, s{sTS}')
    P('s_cmp_ge_u32 s3, 4\ns_cbranch_scc1 L_teamB')
    def tail(T):
        p = T.p
        if cfg.ts:
            p(f's_lshl_b32 s{sT}, s2, 3\ns_add_u32 s{sT}, s{sT}, s3\ns_lshl_b32 s{sT}, s{sT}, 8\ns_add_u32 s{sT}, s{sT}, {TSBASE:#x}\nv_lshlrev_b32 v1, 2, v0\nbuffer_store_dword v{T.vTS}, v1, {srd(SWS)}, s{sT} offen')
        p('s_endpgm')
    tail(A); tail(B)
    hdr = open('cdna_kernels/' + NAME + '.s.ref').read().split('\n')
    top = [l for l in hdr if l.startswith(';') and '@launch' not in l and not l.startswith('; Override') and not l.startswith('; grid=')]
    s = '\n'.join(top) + f'\n; @launch grid=(256,1,1) block=(512,1,1) lds={LDS_BYTES}\n'
    s += f'.amdgcn_target "amdgcn-amd-amdhsa--gfx950"\n.text\n.globl {NAME}_kernel\n.p2align 8\n.type {NAME}_kernel,@function\n{NAME}_kernel:\n'
    s += P.render() + A.p.render() + 'L_teamB:\n' + B.p.render() + 'L_exit:\n    s_endpgm\nL_codeend:\n'
    s += f'''.section .rodata,"a"
.p2align 6
.amdhsa_kernel {NAME}_kernel
  .amdhsa_next_free_vgpr 256
  .amdhsa_next_free_sgpr 102
  .amdhsa_accum_offset 256
  .amdhsa_group_segment_fixed_size 0
  .amdhsa_kernarg_size 104
  .amdhsa_user_sgpr_count 2
  .amdhsa_user_sgpr_kernarg_segment_ptr 1
  .amdhsa_system_sgpr_workgroup_id_x 1
.end_amdhsa_kernel
'''
    return s, A.tsnames, B.tsnames

if __name__ == '__main__':
    cfg = Cfg()
    out = sys.argv[1]
    for a in sys.argv[2:]:
        k, val = a.split('=')
        setattr(cfg, k, eval(val))
    s, ta, tb = build(cfg)
    if cfg.ts:
        s = f'; TSA {" ".join(ta)}\n; TSB {" ".join(tb)}\n' + s
    open(out, 'w').write(s)
```

```python
import sys, struct
from dsl import Prog

NAME = 'adaLN_cond__sliding_local_dilated__mixer_s_mlp__prompt'
CS = 0x100000
MODF, EPOCH, TSBASE = 0x0, 0x4000, 34 * CS
W_O, W_Y, W_HB, W_HALO, W_X1, W_U = 0x00000, 0x2b000, 0x00000, 0x40000, 0x2b000, 0x00000
W_ST2, W_ST4, W_MODP, W_FLAG = 0x88000, 0x8c000, 0x88000, 0x90000
WS_BYTES = 35 * CS
OOB = 0x80000000
ABUF, PARK, WST, MISC = 0, 65536, 81920, 147456
XS = MISC
VEC3, ROWA, ROWH, ROW3 = XS, XS + 3072, XS + 4096, XS + 4608
MODL = MISC + 8192
SACC = MODL
WF = MISC + 14336
FASTW = WF + 32
LDS_BYTES = 163840
P_X, P_QKV, P_WO, P_W1, P_W2, P_W3, P_W4, P_C, P_WMOD, P_OUT, P_WS = 8, 10, 12, 16, 18, 20, 22, 24, 26, 28, 32
SW, SWS, SA, SB = 36, 40, 44, 48
sW, sJ, sR, sQC, sTAG, sFAST, sCB, sBUD, sXCC, sW3K, sW4K, sKOFF = range(52, 64)
sT = 64
sM = 72
sL = 80
sOCT, sHALO, sFV, sFA = 90, 91, 92, 93
sC5 = 85
sTS = 98
LOG2E = 1.4426950408889634
K1 = -2.0 * 0.7978845608028654 * LOG2E
K2 = K1 * 0.044715
def fbits(x): return '0x%08x' % struct.unpack('<I', struct.pack('<f', x))[0]
def srd(i): return f's[{i}:{i+3}]'
def v(a, n=1): return f'v{a}' if n == 1 else f'v[{a}:{a+n-1}]'

class Cfg:
    ts = False
    tsring = False
    force_slow = False
    w3split = (5, 6, 5)
    qd = 3
    modf_at = 3
    st2_at = 7
    pl, pc, px = 3, 1, 0
    u_ahead = 3
    a_ahead = 2
    d1 = 3
    d5 = 4
    p1bars = ((0, 16), (1, 5), (1, 13), (1, 99), (2, 5), (2, 13), (2, 99), (3, 5), (3, 13))
    pf = 0
    wpre = 2
    wthr = 9

def mk_srd(p, s, ptr, nbytes):
    p(f's_mov_b32 s{s}, s{ptr}\ns_mov_b32 s{s+1}, s{ptr+1}\ns_mov_b32 s{s+2}, {nbytes:#x}\ns_mov_b32 s{s+3}, 0x20000')

class Team:
    def __init__(self, cfg, name, vTS, vFA, vFB, vFT):
        self.p = Prog(); self.cfg = cfg; self.name = name
        self.p.nlab = 1000 if name == 'B' else 0
        self.nts = 0; self.vTS = vTS
        self.sync_n = 0
        self.vFA, self.vFB, self.vFT = vFA, vFB, vFT
        self.nbar = 0
        self.tsnames = []
    def ts(self, name):
        if not self.cfg.ts or self.nts == 60: return
        if name.startswith('r_') and not self.cfg.tsring: return
        self.p(f's_memrealtime s[{sTS}:{sTS+1}]\ns_waitcnt lgkmcnt(0)\nv_writelane_b32 v{self.vTS}, s{sTS}, {self.nts}')
        self.tsnames.append(name); self.nts += 1
    def bar(self):
        self.p('s_barrier'); self.nbar += 1
    def arrive(self):
        self.sync_n += 1
        self.p(f'v_mov_b32 v{self.vFT}, {self.sync_n}\nds_write_b32 v{self.vFA}, v{self.vFT}')
    def wait_flags(self, addr_reg, n, sleep=1):
        p = self.p; t = self.vFT; L = p.label('wf')
        p(f'{L}:\nds_read_b128 {v(t,4)}, v{addr_reg}\ns_sub_u32 s{sBUD}, s{sBUD}, 1\ns_cbranch_scc1 {L}x\ns_waitcnt lgkmcnt(0)')
        p(f'v_min3_u32 v{t}, v{t}, v{t+1}, v{t+2}\nv_min_u32 v{t}, v{t}, v{t+3}\nv_cmp_gt_u32 vcc, {n}, v{t}\ns_cbranch_vccz {L}y\ns_sleep {sleep}\ns_branch {L}')
        p(f'{L}x:\ns_mov_b32 s{sBUD}, 0\ns_waitcnt lgkmcnt(0)\n{L}y:')
    def tsync(self):
        self.arrive(); self.wait_flags(self.vFB, self.sync_n)
    def prio(self, n):
        self.p(f's_setprio {n}')
    def store(self, ins, always_sc1=False):
        p = self.p
        if always_sc1:
            for i in ins: p(i + ' sc1')
            return
        L = p.label('st')
        p(f's_cmp_eq_u32 s{sFAST}, 0\ns_cbranch_scc0 {L}f')
        vm0 = p.vm
        for i in ins: p(i + ' sc1')
        p(f's_branch {L}e\n{L}f:')
        p.vm = vm0
        for i in ins: p(i)
        p(f'{L}e:')
    def poll(self, loads, check, sleep=0, first_issued=False):
        p = self.p; L = p.label('pl')
        vm0 = p.vm
        if first_issued: p(f's_branch {L}c')
        p(f'{L}:')
        for i in loads: p(i)
        p(f's_sub_u32 s{sBUD}, s{sBUD}, 1\ns_cbranch_scc1 {L}x\ns_waitcnt vmcnt(0)')
        if first_issued: p(f'{L}c:')
        for i in check: p(i)
        if sleep:
            p(f's_cbranch_vccz {L}y\ns_sleep {sleep}\ns_branch {L}')
        else:
            p(f's_cbranch_vccnz {L}\ns_branch {L}y')
        p(f'{L}x:\ns_mov_b32 s{sBUD}, 0\ns_waitcnt vmcnt(0)\n{L}y:')
        p.vm = vm0

TAGCALC = f's_waitcnt lgkmcnt(0)\ns_mul_i32 s{sTAG}, s{sTAG}, 1664525\ns_add_u32 s{sTAG}, s{sTAG}, 1013904223'

def w_src_addr(p, dst, t, pitch, colbytes_s):
    p(f'''
    v_lshrrev_b32 v{t}, 3, v0
    s_lshl_b32 s{sT}, s{sW}, 3
    v_add_u32 v{t}, s{sT}, v{t}
    v_mul_u32_u24 v{dst}, {pitch}, v{t}
    v_bfe_u32 v{t}, v0, 4, 1
    s_and_b32 s{sT}, s{sW}, 1
    s_lshl_b32 s{sT}, s{sT}, 1
    v_or_b32 v{t}, s{sT}, v{t}
    v_lshlrev_b32 v{t}, 1, v{t}
    v_xor_b32 v{t}, v{t}, v0
    v_and_b32 v{t}, 7, v{t}
    v_lshlrev_b32 v{t}, 4, v{t}
    v_add3_u32 v{dst}, v{dst}, v{t}, s{colbytes_s}
    ''')

def tr_addr3(p, dst, t, base):
    p(f'''
    v_lshrrev_b32 v{t}, 4, v0
    v_mul_u32_u24 v{dst}, 3072, v{t}
    v_bfe_u32 v{t}, v0, 3, 2
    v_xor_b32 v{t}, s{sW}, v{t}
    v_lshl_add_u32 v{dst}, v{t}, 5, v{dst}
    v_bfe_u32 v{t}, v0, 2, 2
    v_lshl_add_u32 v{dst}, v{t}, 7, v{dst}
    v_and_b32 v{t}, 3, v0
    v_lshl_add_u32 v{dst}, v{t}, 3, v{dst}
    ''')
    if base: p(f'v_add_u32 v{dst}, {base}, v{dst}')

def ws_src_addr(p, dst, t):
    p(f'''
    v_lshrrev_b32 v{t}, 5, v0
    v_lshlrev_b32 v{dst}, 14, v{t}
    v_bfe_u32 v{t}, v0, 3, 1
    v_lshl_add_u32 v{dst}, v{t}, 13, v{dst}
    v_bfe_u32 v{t}, v0, 4, 1
    v_lshl_add_u32 v{dst}, v{t}, 12, v{dst}
    v_and_b32 v{t}, 7, v0
    v_lshl_add_u32 v{dst}, v{t}, 4, v{dst}
    s_lshl_b32 s{sT}, s{sJ}, 7
    v_add_u32 v{dst}, s{sT}, v{dst}
    v_xor_b32 v{dst+1}, 32, v{dst}
    v_xor_b32 v{dst+2}, 64, v{dst}
    v_xor_b32 v{dst+3}, 96, v{dst}
    ''')

def tr_addr1(p, dst, t, base):
    p(f'''
    v_bfe_u32 v{t}, v0, 2, 2
    v_lshlrev_b32 v{dst}, 10, v{t}
    v_xor_b32 v{t}, s{sW}, v{t}
    v_lshl_add_u32 v{dst}, v{t}, 5, v{dst}
    v_lshrrev_b32 v{t}, 5, v0
    v_lshl_add_u32 v{dst}, v{t}, 9, v{dst}
    v_bfe_u32 v{t}, v0, 4, 1
    v_lshl_add_u32 v{dst}, v{t}, 7, v{dst}
    v_and_b32 v{t}, 3, v0
    v_lshl_add_u32 v{dst}, v{t}, 3, v{dst}
    v_add_u32 v{dst}, {base}, v{dst}
    ''')

def koff_next(p, stepbytes, nsteps):
    p(f's_add_u32 s{sKOFF}, s{sKOFF}, {stepbytes}\ns_cmp_ge_u32 s{sKOFF}, {stepbytes*nsteps}\ns_cselect_b32 s{sKOFF}, 0, s{sKOFF}')

def xreduce4(p, a, b, c, d, op='v_add_f32'):
    p(f'v_permlane32_swap_b32 v{a}, v{c}\nv_permlane32_swap_b32 v{b}, v{d}\n{op} v{a}, v{a}, v{c}\n{op} v{b}, v{b}, v{d}')
    p(f'v_permlane16_swap_b32 v{a}, v{b}\n{op} v{a}, v{a}, v{b}')

def xreduce4_multi(p, quads):
    for a, b, c, d in quads: p(f'v_permlane32_swap_b32 v{a}, v{c}\nv_permlane32_swap_b32 v{b}, v{d}')
    for a, b, c, d in quads: p(f'v_add_f32 v{a}, v{a}, v{c}\nv_add_f32 v{b}, v{b}, v{d}')
    for a, b, c, d in quads: p(f'v_permlane16_swap_b32 v{a}, v{b}')
    for a, b, c, d in quads: p(f'v_add_f32 v{a}, v{a}, v{b}')

def group_allreduce(p, regs, tmps):
    for sw in ('v_permlane32_swap_b32', 'v_permlane16_swap_b32'):
        for r, t in zip(regs, tmps): p(f'v_mov_b32 v{t}, v{r}')
        for r, t in zip(regs, tmps): p(f'{sw} v{r}, v{t}')
        for r, t in zip(regs, tmps): p(f'v_add_f32 v{r}, v{r}, v{t}')

def gemm_kmajor(T, nk, vW, vACC, frs, vAD, slot_of=None):
    p = T.p; nfr = len(frs)
    steps = [(j, t) for j in range(nk) for t in range(4)]
    def lds_off(j, t):
        c, jj = divmod(j, 4)
        s = slot_of(c) if slot_of else c
        return s * 16384 + jj * 4096 + t * 256
    tok = {}
    def rd(i):
        if i % 16 == 0: T.bar()
        j, t = steps[i]; o = lds_off(j, t)
        p(f'ds_read_b128 {v(frs[i % nfr], 4)}, v{vAD[o >> 16]} offset:{o & 0xffff}'); tok[i] = p.lg
    n = len(steps)
    for i in range(nfr): rd(i)
    for i in range(0, n, 2):
        p.wait_lg(tok[i + 1])
        for ii in (i, i + 1):
            j, t = steps[ii]
            c = '0' if j == 0 else v(vACC + 4*t, 4)
            p(f'v_mfma_f32_16x16x32_bf16 {v(vACC+4*t,4)}, {v(vW+4*j,4)}, {v(frs[ii % nfr],4)}, {c}')
            if ii + nfr < n: rd(ii + nfr)

def adma_run(T, issue, nch, ahead=2, after=None):
    p = T.p; tok = {}
    for c in range(min(ahead, nch)):
        issue(c); tok[c] = p.vm
    if after and -1 in after: after[-1]()
    for c in range(nch):
        p.wait_vm(tok[c]); T.bar()
        if c + ahead < nch:
            issue(c + ahead); tok[c + ahead] = p.vm
        if after and c in after: after[c]()

def adma_k_prep(p, base):
    for c in range(4):
        p(f's_add_u32 s{sT}, s{sQC}, {c}\ns_and_b32 s{sT}, s{sT}, 3\ns_lshl_b32 s{sT}, s{sT}, 14\ns_add_u32 s{sT}, s{sT}, s{sW4K}\ns_add_u32 s{sT}, s{sT}, s{sCB}\ns_add_u32 s{sL+c}, s{sT}, {base:#x}')

def adma_k_issue(T, vOFFs):
    p = T.p
    def issue(c):
        p(f's_add_u32 m0, s{sW4K}, {ABUF + c*16384}')
        for i in range(4):
            p(f'buffer_load_dwordx4 v{vOFFs[c]}, {srd(SWS)}, s{sL+c} offen offset:{i*1024} sc1 lds')
    return issue

def publish_and_poll(T, ph, t, extra_w1=None, halo=False, mid=None):
    p = T.p
    p(f's_lshl_b32 s{sT}, s{sJ}, 2\nv_mov_b32 v{t}, s{sT}\ns_add_u32 s{sFV}, s{sTAG}, {ph}\nv_mov_b32 v{t+1}, s{sFV}')
    if halo:
        p(f's_add_u32 s{sT+2}, s{sHALO}, {W_FLAG - W_HALO:#x}')
    p('s_waitcnt vmcnt(0) lgkmcnt(0)')
    T.ts(f'vm_{ph}')
    T.bar()
    T.prio(T.cfg.pl)
    L = p.label('pub')
    p(f's_cmp_lg_u32 s{sW}, 0\ns_cbranch_scc1 {L}n')
    T.store([f'buffer_store_dword v{t+1}, v{t}, {srd(SWS)}, s{sFA} offen'])
    if halo:
        p(f'buffer_store_dword v{t+1}, v{t}, {srd(SWS)}, s{sT+2} offen offset:128 sc1')
    if extra_w1 is not None:
        p(f's_branch {L}e\n{L}n:\ns_cmp_lg_u32 s{sW}, 1\ns_cbranch_scc1 {L}e')
        extra_w1()
        p(f'{L}e:')
    else:
        p(f'{L}n:')
    T.ts(f'B1_{ph}')
    if mid: mid()
    L = p.label('pol')
    p(f's_cmp_lg_u32 s{sW}, 0\ns_cbranch_scc1 {L}')
    p(f'v_and_b32 v{t}, 7, v0\nv_lshlrev_b32 v{t}, 2, v{t}')
    chk = [f'v_subrev_u32 v{t+2}, s{sFV}, v{t+2}', f'v_cmp_lt_u32 vcc, 7, v{t+2}']
    T.poll([f'buffer_load_dword v{t+2}, v{t}, {srd(SWS)}, s{sFA} offen sc1'], chk)
    if halo:
        p(f'''
        s_mov_b32 s{sT+2}, 0x33
        s_cmp_eq_u32 s{sR}, 0
        s_cselect_b32 s{sT+2}, 0, s{sT+2}
        s_mov_b32 s{sT+3}, 0xcc
        s_cmp_eq_u32 s{sR}, 31
        s_cselect_b32 s{sT+3}, 0, s{sT+3}
        s_or_b32 s{sT+2}, s{sT+2}, s{sT+3}
        s_mov_b32 s{sT+3}, 0
        ''')
        T.poll([f'buffer_load_dword v{t+2}, v{t}, {srd(SWS)}, s{sFA} offen offset:128 sc1'], chk + [f's_and_b64 vcc, vcc, s[{sT+2}:{sT+3}]'], sleep=4)
    p(f'{L}:')
    T.bar()
    T.ts(f'B2_{ph}')

def gelu_pairs(p, x, tmp, out):
    for h in (0, 2): p(f'v_pk_mul_f32 {v(tmp+h,2)}, {v(x+h,2)}, {v(x+h,2)}')
    for h in (0, 2): p(f'v_pk_fma_f32 {v(tmp+h,2)}, {v(tmp+h,2)}, s[{sT+4}:{sT+5}], s[{sT+4}:{sT+5}] op_sel:[0,0,1] op_sel_hi:[1,0,1]')
    for h in (0, 2): p(f'v_pk_mul_f32 {v(tmp+h,2)}, {v(tmp+h,2)}, {v(x+h,2)}')
    for i in range(4): p(f'v_exp_f32 v{tmp+i}, v{tmp+i}')
    for h in (0, 2): p(f'v_pk_add_f32 {v(tmp+h,2)}, {v(tmp+h,2)}, 1.0 op_sel_hi:[1,0]')
    for i in range(4): p(f'v_rcp_f32 v{tmp+i}, v{tmp+i}')
    for h in (0, 2): p(f'v_pk_mul_f32 {v(tmp+h,2)}, {v(tmp+h,2)}, {v(x+h,2)}')
    p(f'v_cvt_pk_bf16_f32 v{out}, v{tmp}, v{tmp+1}\nv_cvt_pk_bf16_f32 v{out+1}, v{tmp+2}, v{tmp+3}')

def pub_addr(p, dst, t, oct_s, tilemajor=False):
    if not tilemajor:
        p(f'v_lshrrev_b32 v{t}, 5, v0\nv_add_u32 v{t}, s{oct_s}, v{t}\nv_lshlrev_b32 v{t}, 10, v{t}\nv_and_b32 v{dst}, 31, v0\nv_lshl_add_u32 v{dst}, v{dst}, 4, v{t}')
    else:
        p(f'v_lshrrev_b32 v{t}, 5, v0\nv_add_u32 v{t}, s{oct_s}, v{t}\nv_lshlrev_b32 v{t}, 8, v{t}\nv_and_b32 v{dst}, 15, v0\nv_lshl_add_u32 v{dst}, v{dst}, 4, v{t}\nv_bfe_u32 v{t}, v0, 4, 1\nv_lshl_add_u32 v{dst}, v{t}, 14, v{dst}')

def w3_setup(p, t, vA3):
    p(f's_min_u32 s{sT+6}, s{sJ}, 3\ns_mul_i32 s{sT+7}, s{sJ}, 5\ns_add_u32 s{sT+6}, s{sT+6}, s{sT+7}\ns_lshl_b32 s{sT+7}, s{sT+6}, 6')
    w_src_addr(p, vA3, t, 2752, sT + 7)
    p(f'''
    v_add_u32 v{vA3+1}, 128, v{vA3}
    v_add_u32 v{vA3+2}, 256, v{vA3}
    s_cmp_lt_u32 s{sJ}, 3
    s_cselect_b32 s{sT+7}, 128, 64
    v_cmp_gt_u32 vcc, s{sT+7}, v{t}
    v_mov_b32 v{t}, {OOB:#x}
    v_cndmask_b32_e64 v{vA3+2}, v{t}, v{vA3+2}, vcc
    ''')

def w3_go(p, vA3, first, c0, c1, thr):
    if c0 == 0:
        mk_srd(p, SW, P_W3, 512 * 2752)
        p(f's_lshl_b32 s{sT}, s{sQC}, 2\ns_add_u32 s{sT}, s{sT}, {first}\ns_and_b32 s{sT}, s{sT}, 15\ns_mul_i32 s{sKOFF}, s{sT}, {32*2752}')
    for c in range(c0, c1):
        if 3*c + 3 > thr: p(f's_waitcnt vmcnt({thr - 3})')
        for s in range(3):
            p(f's_add_u32 m0, s{sW3K}, {PARK + c*12288 + s*1024}\nbuffer_load_dwordx4 v{vA3+s}, {srd(SW)}, s{sKOFF} offen lds')
        koff_next(p, 32 * 2752, 16)

def unpack8(p, dst, src):
    for k in range(4):
        p(f'v_lshlrev_b32 v{dst+2*k}, 16, v{src+k}\nv_and_b32 v{dst+2*k+1}, 0xffff0000, v{src+k}')

def unpack4(p, dst, src):
    p(f'v_lshlrev_b32 v{dst}, 16, v{src}\nv_and_b32 v{dst+1}, 0xffff0000, v{src}\nv_lshlrev_b32 v{dst+2}, 16, v{src+1}\nv_and_b32 v{dst+3}, 0xffff0000, v{src+1}')

def row_allreduce(p, regs):
    for sh in (8, 4, 2, 1):
        for r in regs:
            p(f'v_add_f32_dpp v{r}, v{r}, v{r} row_ror:{sh} row_mask:0xf bank_mask:0xf')

def kernarg_wait(T):
    p = T.p
    p(f's_waitcnt lgkmcnt(0)\ns_load_dword s{sTAG}, s[{P_WS}:{P_WS+1}], {EPOCH:#x}')
    T.bar()
    mk_srd(p, SWS, P_WS, WS_BYTES)

def team_a(cfg):
    T = Team(cfg, 'A', vTS=63, vFA=60, vFB=61, vFT=56)
    p = T.p
    WR = 64
    vWA, vTR = 52, 53
    T.prio(cfg.pl)
    p(f'''
    v_mov_b32 v{T.vFB}, {WF}
    s_lshl_b32 s{sT}, s{sW}, 2
    v_add_u32 v{T.vFA}, s{sT}, v{T.vFB}
    v_and_b32 v1, 15, v0
    v_lshrrev_b32 v2, 4, v0
    s_lshl_b32 s{sT}, s{sJ}, 6
    s_lshl_b32 s{sT+1}, s{sW}, 4
    s_add_u32 s{sT}, s{sT}, s{sT+1}
    v_lshl_add_u32 v3, v2, 2, s{sT}
    v_lshlrev_b32 v5, 1, v3
    v_mul_u32_u24 v3, 6144, v3
    s_mul_i32 s{sT}, s{sR}, 192
    v_lshlrev_b32 v4, 4, v1
    v_add3_u32 v3, v3, v4, s{sT}
    v_cmp_gt_u32 vcc, 12, v1
    v_mov_b32 v4, {OOB:#x}
    v_cndmask_b32_e64 v3, v4, v3, vcc
    s_lshl_b32 s{sT+7}, s{sJ}, 7
    ''')
    w_src_addr(p, vWA, 4, 3072, sT + 7)
    p(f's_mul_i32 s{sKOFF}, s{sQC}, {4*32*3072}\ns_mov_b32 s{sT+1}, 6144\ns_mov_b32 s{sT+2}, 12288\ns_mov_b32 s{sT+3}, 18432')
    kernarg_wait(T)
    mk_srd(p, SA, P_WMOD, 512 * 6144); mk_srd(p, SB, P_C, 1024)
    p(f'''
    buffer_load_dwordx2 v[6:7], v5, {srd(SB)}, 0 offen
    buffer_load_dwordx4 v[8:11], v3, {srd(SA)}, 0 offen nt
    buffer_load_dwordx4 v[12:15], v3, {srd(SA)}, s{sT+1} offen nt
    buffer_load_dwordx4 v[16:19], v3, {srd(SA)}, s{sT+2} offen nt
    buffer_load_dwordx4 v[20:23], v3, {srd(SA)}, s{sT+3} offen nt
    ''')
    tok_mod = p.vm
    mk_srd(p, SW, P_QKV, 512 * 3072)
    qslot = [4, 5, 0, 1, 2, 3, 4, 5]
    qoff = lambda ks: qslot[ks // 2] * 24576 + (ks % 2) * 12288
    tok = {}
    def q_issue(ks):
        p(f's_add_u32 m0, s{sW3K}, {qoff(ks)}')
        for s in range(3):
            p(f'buffer_load_dwordx4 v{vWA}, {srd(SW)}, s{sKOFF} offen offset:{s*1024} lds')
        tok[ks] = p.vm
        if ks < 15: koff_next(p, 32 * 3072, 16)
    def q_tread(k0, n):
        for ks in range(k0, k0 + n):
            for s in range(3):
                for h in range(2):
                    o = qoff(ks) + s*1024 + h*512
                    p(f'ds_read_b64_tr_b16 {v(WR + 12*ks + 4*s + 2*h, 2)}, v{vTR + (o >> 16)} offset:{o & 0xffff}')
    def mod_stage1():
        p(TAGCALC)
        T.ts('issued')
        p.wait_vm(tok_mod)
        T.ts('modld')
        unpack4(p, 24, 6)
        for i in range(4): p(f'v_mul_f32 v{28+i}, {fbits(-LOG2E)}, v{24+i}')
        for i in range(4): p(f'v_exp_f32 v{28+i}, v{28+i}')
        for i in range(4): p(f'v_add_f32 v{28+i}, 1.0, v{28+i}')
        for i in range(4): p(f'v_rcp_f32 v{28+i}, v{28+i}')
        for i in range(4): p(f'v_mul_f32 v{24+i}, v{24+i}, v{28+i}')
        p('v_cvt_pk_bf16_f32 v6, v24, v25\nv_cvt_pk_bf16_f32 v7, v26, v27')
        unpack4(p, 24, 6)
        for i in range(4):
            unpack8(p, 40, 8 + 4*i)
            sel = f'op_sel:[0,{i&1}{"" if i == 0 else ",0"}] op_sel_hi:[1,{i&1}{"" if i == 0 else ",1"}]'
            for k in range(4):
                if i == 0: p(f'v_pk_mul_f32 {v(32+2*k,2)}, {v(40+2*k,2)}, v[24:25] {sel}')
                else: p(f'v_pk_fma_f32 {v(32+2*k,2)}, {v(40+2*k,2)}, {v(24 + (i & 2),2)}, {v(32+2*k,2)} {sel}')
        xreduce4_multi(p, [(32, 34, 36, 38), (33, 35, 37, 39)])
        p(f'v_mov_b32 v34, s{sTAG}\nv_mov_b32 v35, s{sXCC}\nbuffer_store_dwordx4 v[32:35], v48, {srd(SWS)}, s{sT+4} offen sc1')
        T.ts('mod1')
    def mod_stage2():
        L = p.label('m2')
        p(f's_cmp_lg_u32 s{sW}, 0\ns_cbranch_scc1 {L}')
        vm0 = p.vm
        p(f'''
        s_lshl_b32 s{sT}, s{sJ}, 12
        s_add_u32 s{sT}, s{sT}, s{sCB}
        s_add_u32 s{sT}, s{sT}, {W_MODP:#x}
        s_mov_b32 s{sM+2}, 0x3f3f3f3f
        s_mov_b32 s{sM+3}, 0x3f3f3f3f
        v_lshlrev_b32 v4, 4, v0
        ''')
        T.poll([f'buffer_load_dwordx4 {v(16+4*i,4)}, v4, {srd(SWS)}, s{sT} offen offset:{i*1024} sc1' for i in range(4)],
               [f'v_xor_b32 v5, s{sTAG}, v18', f'v_xor_b32 v6, s{sTAG}, v22', f'v_xor_b32 v7, s{sTAG}, v26', f'v_xor_b32 v8, s{sTAG}, v30',
                'v_or3_b32 v5, v5, v6, v7', 'v_or_b32 v5, v5, v8', 'v_cmp_ne_u32 vcc, 0, v5', f's_and_b64 vcc, vcc, s[{sM+2}:{sM+3}]'], sleep=4)
        p(f'''
        v_pk_add_f32 v[16:17], v[16:17], v[20:21]
        v_pk_add_f32 v[24:25], v[24:25], v[28:29]
        v_xor_b32 v5, s{sXCC}, v19
        v_pk_add_f32 v[16:17], v[16:17], v[24:25]
        v_xor_b32 v6, s{sXCC}, v23
        v_xor_b32 v7, s{sXCC}, v27
        v_add_f32_dpp v16, v16, v16 row_ror:8 row_mask:0xf bank_mask:0xf
        v_add_f32_dpp v17, v17, v17 row_ror:8 row_mask:0xf bank_mask:0xf
        v_xor_b32 v8, s{sXCC}, v31
        v_or3_b32 v5, v5, v6, v7
        ''')
        group_allreduce(p, (16, 17), (20, 21))
        p(f'''
        v_cvt_pk_bf16_f32 v16, v16, v17
        v_mov_b32 v17, s{sTAG}
        v_lshlrev_b32 v6, 3, v0
        v_mov_b32 v7, {OOB:#x}
        v_cmp_gt_u32 vcc, 6, v0
        s_lshl_b32 s{sT}, s{sR}, 3
        s_add_u32 s{sT}, s{sT}, s{sJ}
        v_cndmask_b32_e64 v6, v7, v6, vcc
        s_mul_i32 s{sT}, s{sT}, 48
        buffer_store_dwordx2 v[16:17], v6, {srd(SWS)}, s{sT} offen sc1
        v_or_b32 v5, v5, v8
        v_cmp_ne_u32 vcc, 0, v5
        s_and_b64 vcc, vcc, s[{sM+2}:{sM+3}]
        s_cselect_b32 s{sT+1}, 0, {0 if cfg.force_slow else 1}
        v_mov_b32 v5, s{sT+1}
        v_mov_b32 v6, {FASTW}
        ds_write_b32 v6, v5
        v_mov_b32 v5, 0
        buffer_load_dword v9, v5, {srd(SWS)}, s{sFA} offen sc1
        {L}:
        ''')
        p.vm = vm0
        T.ts('mod2')
    for ks in range(cfg.qd): q_issue(ks)
    p(f'''
    v_lshl_add_u32 v3, v1, 2, v2
    v_mul_u32_u24 v4, 43, v3
    v_lshrrev_b32 v4, 8, v4
    v_mul_u32_u24 v5, 6, v4
    v_sub_u32 v3, v3, v5
    v_lshlrev_b32 v3, 4, v3
    v_lshl_add_u32 v3, v4, 12, v3
    v_cmp_gt_u32 vcc, 12, v1
    v_mov_b32 v4, {OOB:#x}
    v_cndmask_b32_e64 v48, v4, v3, vcc
    s_lshl_b32 s{sT+4}, s{sJ}, 2
    s_add_u32 s{sT+4}, s{sT+4}, s{sW}
    s_lshl_b32 s{sT+4}, s{sT+4}, 7
    s_add_u32 s{sT+4}, s{sT+4}, s{sCB}
    s_add_u32 s{sT+4}, s{sT+4}, {W_MODP:#x}
    ''')
    tr_addr3(p, vTR, 4, 0)
    p(f'v_add_u32 v{vTR+1}, 0x10000, v{vTR}\nv_add_u32 v{vTR+2}, 0x20000, v{vTR}')
    mod_stage1()
    for landed in range(16):
        p.wait_vm(tok[landed])
        if landed + cfg.qd < 16:
            q_issue(landed + cfg.qd)
        if landed % 4 == 3:
            p('s_waitcnt lgkmcnt(0)'); T.ts(f'r_w{landed}'); T.tsync(); T.ts(f'r_s{landed}')
            q_tread(landed - 3, 4)
            if landed == 11:
                p('s_waitcnt lgkmcnt(0)'); T.arrive()
        if landed + cfg.qd == cfg.st2_at: mod_stage2()
    assert cfg.qd <= 4
    vFR, vQ, vK, vV = 4, 20, 24, 28
    vKB, vVB, vQB, vP, vSEL, vONE, vOUT, vT_, vAE, vAO, vST = 32, 36, 40, 42, 46, 50, 54, 58, 1, 2, 3
    sBIAS, sSC = 84, 94
    p(f'''
    v_and_b32 v4, 15, v0
    v_lshrrev_b32 v5, 4, v0
    v_and_b32 v6, 1, v0
    v_cmp_eq_u32 s[{sM}:{sM+1}], 1, v6
    v_lshl_add_u32 v7, v5, 2, v6
    v_cmp_le_u32 s[{sM+2}:{sM+3}], v7, v4
    v_add_u32 v7, 2, v7
    v_cmp_le_u32 s[{sM+4}:{sM+5}], v7, v4
    v_mov_b32 v8, 0x0c0c0100
    v_mov_b32 v13, 0x01000c0c
    v_mov_b32 v10, 0x0c0c0302
    v_mov_b32 v11, 0x03020c0c
    v_mov_b32 v12, 0x0c0c0c0c
    v_cndmask_b32 v8, v8, v13, s[{sM}:{sM+1}]
    v_cndmask_b32 v10, v10, v11, s[{sM}:{sM+1}]
    v_cndmask_b32 v{vSEL}, v12, v8, s[{sM+2}:{sM+3}]
    v_cndmask_b32 v{vSEL+1}, v12, v10, s[{sM+4}:{sM+5}]
    v_cndmask_b32 v{vSEL+2}, v8, v12, s[{sM+2}:{sM+3}]
    v_cndmask_b32 v{vSEL+3}, v10, v12, s[{sM+4}:{sM+5}]
    v_xor_b32 v6, v4, v5
    v_and_b32 v6, 7, v6
    v_and_b32 v7, 8, v4
    v_or_b32 v6, v6, v7
    v_lshlrev_b32 v6, 4, v6
    v_lshl_add_u32 v{vAE}, v5, 8, v6
    v_xor_b32 v{vAO}, 64, v{vAE}
    s_cmp_eq_u32 s{sR}, 0
    s_cselect_b32 s{sBIAS}, {fbits(-1e30)}, 0
    s_mov_b32 s{sSC}, {fbits(0.25*LOG2E)}
    ''')
    pub_addr(p, vST, 4, sOCT)
    adma_k_prep(p, W_O)
    p(f'v_mov_b32 v4, {FASTW}\nds_read_b32 v4, v4\ns_waitcnt vmcnt(0) lgkmcnt(0)\nv_readfirstlane_b32 s{sFAST}, v4')
    for i in range(4): p(f'v_mov_b32 v{vONE+i}, 0x3f803f80')
    T.ts('wq_done')
    T.bar()
    T.prio(cfg.pc)
    T.ts('h0')
    tk = {}
    def rd(i):
        t, j = divmod(i, 16)
        if i == 64:
            p(f'v_add_u32 v{vAE}, 0x10000, v{vAE}\nv_add_u32 v{vAO}, 0x10000, v{vAO}')
        p(f'ds_read_b128 {v(vFR+4*(j%4),4)}, v{vAO if j & 1 else vAE} offset:{(t % 4)*16384 + j*1024}'); tk[i] = p.lg
    for i in range(4): rd(i)
    for t in range(5):
        for j in range(16):
            if (t, j) in cfg.p1bars: T.bar()
            p.wait_lg(tk[16*t + j])
            f = v(vFR + 4*(j % 4), 4); w = WR + 12*j
            cc = lambda a: '0' if j == 0 else v(a, 4)
            p(f'v_mfma_f32_16x16x32_bf16 {v(vK,4)}, {v(w+4,4)}, {f}, {cc(vK)}')
            if t > 0:
                p(f'v_mfma_f32_16x16x32_bf16 {v(vQ,4)}, {v(w,4)}, {f}, {cc(vQ)}')
            p(f'v_mfma_f32_16x16x32_bf16 {v(vV,4)}, {f}, {v(w+8,4)}, {cc(vV)}')
            if 16*t + j + 4 < 80: rd(16*t + j + 4)
        if (t, 16) in cfg.p1bars: T.bar()
        cur, prv = 2*(t & 1), 2*((t+1) & 1)
        p(f'v_cvt_pk_bf16_f32 v{vKB+cur}, v{vK}, v{vK+1}\nv_cvt_pk_bf16_f32 v{vKB+cur+1}, v{vK+2}, v{vK+3}')
        if t > 0: p(f'v_cvt_pk_bf16_f32 v{vQB}, v{vQ}, v{vQ+1}\nv_cvt_pk_bf16_f32 v{vQB+1}, v{vQ+2}, v{vQ+3}')
        p(f'v_cvt_pk_bf16_f32 v{vVB+cur}, v{vV}, v{vV+1}\nv_cvt_pk_bf16_f32 v{vVB+cur+1}, v{vV+2}, v{vV+3}')
        if t == 0: continue
        odd, m0, m1 = f's[{sM}:{sM+1}]', f's[{sM+2}:{sM+3}]', f's[{sM+4}:{sM+5}]'
        a, b = vT_, vT_ + 1
        p(f'''
        v_mfma_f32_16x16x16_bf16 {v(vK,4)}, {v(vKB+cur,2)}, {v(vQB,2)}, 0
        v_mfma_f32_16x16x16_bf16 {v(vV,4)}, {v(vKB+prv,2)}, {v(vQB,2)}, 0
        v_cndmask_b32 v{vQ}, v{vK}, v{vK+1}, {odd}
        v_cndmask_b32 v{vQ+1}, v{vK+2}, v{vK+3}, {odd}
        v_cndmask_b32 v{vQ+2}, v{vV}, v{vV+1}, {odd}
        v_cndmask_b32 v{vQ+3}, v{vV+2}, v{vV+3}, {odd}
        ''')
        if t == 1:
            p(f'v_add_f32 v{vQ+2}, s{sBIAS}, v{vQ+2}\nv_add_f32 v{vQ+3}, s{sBIAS}, v{vQ+3}')
        p(f'''
        v_cndmask_b32 v{vQ}, v{vQ+2}, v{vQ}, {m0}
        v_cndmask_b32 v{vQ+1}, v{vQ+3}, v{vQ+1}, {m1}
        v_max_f32 v{a}, v{vQ}, v{vQ+1}
        v_max_f32 v{b}, v{vQ}, v{vQ+1}
        v_mul_f32 v{vQ}, s{sSC}, v{vQ}
        v_mul_f32 v{vQ+1}, s{sSC}, v{vQ+1}
        v_permlane32_swap_b32 v{a}, v{b}
        v_max_f32 v{vQ+2}, v{a}, v{b}
        v_max_f32 v{vQ+3}, v{a}, v{b}
        v_permlane16_swap_b32 v{vQ+2}, v{vQ+3}
        v_max_f32 v{a}, v{vQ+2}, v{vQ+3}
        v_fma_f32 v{vQ}, -v{a}, s{sSC}, v{vQ}
        v_fma_f32 v{vQ+1}, -v{a}, s{sSC}, v{vQ+1}
        v_exp_f32 v{vQ}, v{vQ}
        v_exp_f32 v{vQ+1}, v{vQ+1}
        v_cvt_pk_bf16_f32 v{a}, v{vQ}, v{vQ+1}
        v_perm_b32 v{vP+cur}, v{a}, v{a}, v{vSEL}
        v_perm_b32 v{vP+cur+1}, v{a}, v{a}, v{vSEL+1}
        v_perm_b32 v{vP+prv}, v{a}, v{a}, v{vSEL+2}
        v_perm_b32 v{vP+prv+1}, v{a}, v{a}, v{vSEL+3}
        v_mfma_f32_16x16x32_bf16 {v(vK,4)}, {v(vONE,4)}, {v(vP,4)}, 0
        v_mfma_f32_16x16x32_bf16 {v(vV,4)}, {v(vVB,4)}, {v(vP,4)}, 0
        v_rcp_f32 v{a}, v{vK}
        v_mul_f32 v{vQ}, v{vV}, v{a}
        v_mul_f32 v{vQ+1}, v{vV+1}, v{a}
        v_mul_f32 v{vQ+2}, v{vV+2}, v{a}
        v_mul_f32 v{vQ+3}, v{vV+3}, v{a}
        ''')
        o = vOUT + 2*((t-1) & 1)
        p(f'v_cvt_pk_bf16_f32 v{o}, v{vQ}, v{vQ+1}\nv_cvt_pk_bf16_f32 v{o+1}, v{vQ+2}, v{vQ+3}')
        if t in (2, 4):
            p(f'v_permlane16_swap_b32 v{vOUT}, v{vOUT+2}\nv_permlane16_swap_b32 v{vOUT+1}, v{vOUT+3}')
            T.store([f'buffer_store_dwordx4 {v(vOUT,4)}, v{vST}, {srd(SWS)}, s{sCB} offen offset:{(t//2-1)*512}'], always_sc1=True)
        if (t, 99) in cfg.p1bars: T.bar()
    T.ts('p1_done')
    vLIN = 1
    W1R = 192
    vTR1, vTR3, vA3 = 4, 5, 6
    vG1, vS1, vC1, vC3 = 20, 24, 28, 32
    n_a, n_b, n_c = cfg.w3split
    p(f'v_lshlrev_b32 v{vLIN}, 4, v0')
    tr_addr1(p, vTR1, 10, WST)
    def w1_tread():
        for j in range(16):
            for h in range(2):
                p(f'ds_read_b64_tr_b16 {v(W1R + 4*j + 2*h, 2)}, v{vTR1} offset:{j*4096 + h*256}')
        p('s_waitcnt lgkmcnt(0)')
    publish_and_poll(T, 1, 10, mid=w1_tread)
    adma_run(T, adma_k_issue(T, [vLIN]*4), 4, ahead=cfg.a_ahead, after={-1: lambda: w3_setup(p, 16, vA3), 2: lambda: w3_go(p, vA3, 0, 0, cfg.wpre, cfg.wthr), 3: lambda: w3_go(p, vA3, 0, cfg.wpre, n_a, cfg.wthr)})
    T.ts('a2_done')
    T.prio(cfg.px)
    tr_addr3(p, vTR3, 16, PARK)
    def w3_tread(first, n):
        for c in range(n):
            jj = first + c
            for s in range(3):
                for h in range(2):
                    p(f'ds_read_b64_tr_b16 {v(WR + 12*jj + 4*s + 2*h, 2)}, v{vTR3} offset:{c*12288 + s*1024 + h*512}')
        p('s_waitcnt lgkmcnt(0)')
    def c3_mfma(first, n):
        for c in range(n):
            jj = first + c
            for s in range(3):
                p(f'v_mfma_f32_16x16x32_bf16 {v(vC3+4*s,4)}, {v(WR+12*jj+4*s,4)}, {v(vONE,4)}, {"0" if jj == 0 else v(vC3+4*s,4)}')
    p(f'''
    v_and_b32 v10, 15, v0
    v_min_u32 v10, 2, v10
    v_lshlrev_b32 v10, 10, v10
    v_lshrrev_b32 v11, 4, v0
    v_lshl_add_u32 v10, v11, 4, v10
    v_add_u32 v10, {VEC3}, v10
    ''')
    for j in range(16): p(f'ds_read_b128 {v(128+4*j,4)}, v10 offset:{j*64}')
    vM0, vH0, vM1, vH1 = 44, 45, 46, 47
    p(f'''
    s_lshr_b32 s{sT}, s{sJ}, 2
    s_add_u32 s{sT}, s{sT}, 1
    s_sub_u32 s{sT+1}, 0, s{sT}
    s_and_b32 s{sT+2}, s{sJ}, 2
    s_cmp_eq_u32 s{sT+2}, 0
    s_cselect_b32 s{sT}, s{sT}, s{sT+1}
    s_mov_b32 s{sHALO}, {CS + W_HALO:#x}
    s_cselect_b32 s{sHALO}, s{sHALO}, {(W_HALO - CS) & 0xffffffff:#x}
    s_add_u32 s{sHALO}, s{sHALO}, s{sCB}
    v_lshrrev_b32 v14, 5, v0
    v_add_u32 v14, s{sOCT}, v14
    v_lshlrev_b32 v14, 10, v14
    v_and_b32 v11, 31, v0
    v_add_u32 v11, s{sT}, v11
    v_mov_b32 v13, {OOB:#x}
    ''')
    for pr, (m, h) in enumerate(((vM0, vH0), (vM1, vH1))):
        if pr: p('v_add_u32 v11, 32, v11')
        p(f'v_and_b32 v12, 63, v11\nv_lshl_add_u32 v12, v12, 4, v14\nv_cmp_gt_u32 vcc, 64, v11\nv_cndmask_b32_e64 v{m}, v13, v12, vcc\nv_cndmask_b32_e64 v{h}, v12, v13, vcc')
    vAD = 2
    p(f'v_and_b32 v12, 15, v0\nv_lshrrev_b32 v11, 4, v0\nv_lshlrev_b32 v12, 4, v12\nv_lshl_add_u32 v{vAD}, v11, 10, v12\nv_add_u32 v3, {ROWA}, v12')
    HR = [9, 48, 49, 54]
    for c in range(4):
        p(f'''
        s_add_u32 s{sT}, s{sQC}, {c}
        s_and_b32 s{sT}, s{sT}, 3
        s_lshr_b32 s{sT+1}, s{sT}, 1
        s_lshl_b32 s{sT+1}, 2, s{sT+1}
        s_sub_u32 s{sT+1}, s{sT+1}, 1
        s_brev_b32 s{sT+2}, s{sT+1}
        s_and_b32 s{sT}, s{sT}, 1
        s_cmp_eq_u32 s{sT}, 0
        s_cselect_b32 s{sM+6}, s{sT+1}, 0
        s_cselect_b32 s{sM+7}, 0, s{sT+2}
        s_cselect_b32 s{sT+1}, 0, 31
        s_cmp_eq_u32 s{sR}, s{sT+1}
        s_mov_b32 s{sT+1}, {OOB:#x}
        s_cselect_b32 s{sT+1}, s{sT+1}, {W_HALO - W_HB:#x}
        v_add_u32 v11, s{sT+1}, v{vLIN}
        v_cndmask_b32 v{HR[c]}, v{vLIN}, v11, s[{sM+6}:{sM+7}]
        ''')
    p(f's_mov_b32 s{sT+4}, {fbits(K2)}\ns_mov_b32 s{sT+5}, {fbits(K1)}')
    p('s_waitcnt vmcnt(0) lgkmcnt(0)')
    T.ts('w2_done')
    T.bar()
    T.prio(cfg.pc)
    assert n_a <= 5
    for j in range(16):
        p(f'v_mfma_f32_16x16x32_bf16 {v(16,4)}, {v(W1R+4*j,4)}, {v(128+4*j,4)}, {"0" if j == 0 else v(16,4)}')
    w3_tread(0, n_a)
    T.bar()
    c3_mfma(0, n_a)
    for i in range(4):
        p(f'v_mov_b32_dpp v{vG1+i}, v{16+i} row_newbcast:0 row_mask:0xf bank_mask:0xf')
        p(f'v_mov_b32_dpp v{vS1+i}, v{16+i} row_newbcast:1 row_mask:0xf bank_mask:0xf')
        p(f'v_mov_b32_dpp v{vC1+i}, v{16+i} row_newbcast:2 row_mask:0xf bank_mask:0xf')
    vACC, vRW = 176, 128
    gemm_kmajor(T, 16, W1R, vACC, [144 + 4*i for i in range(8)], [vAD])
    T.ts('p3_mm')
    T.bar()
    for t in range(4): p(f'ds_read_b128 {v(vRW+4*t,4)}, v3 offset:{t*256}')
    p('s_waitcnt lgkmcnt(0)')
    for t in range(4):
        a = vACC + 4*t; c = vRW + 4*t
        for h in (0, 2): p(f'v_pk_mul_f32 {v(a+h,2)}, {v(a+h,2)}, {v(c,2)} op_sel_hi:[1,0]')
        for h in (0, 2): p(f'v_pk_fma_f32 {v(a+h,2)}, {v(vG1+h,2)}, {v(c,2)}, {v(a+h,2)} op_sel:[0,1,0] op_sel_hi:[1,1,1]')
        for h in (0, 2): p(f'v_pk_fma_f32 {v(a+h,2)}, {v(vS1+h,2)}, {v(c+2,2)}, {v(a+h,2)} op_sel_hi:[1,0,1]')
        for h in (0, 2): p(f'v_pk_fma_f32 {v(a+h,2)}, {v(vC1+h,2)}, {v(c+2,2)}, {v(a+h,2)} op_sel:[0,1,0] op_sel_hi:[1,1,1]')
        o = 12 + 4*(t >> 1) + 2*(t & 1)
        gelu_pairs(p, a, 56, o)
        if t & 1:
            ob = 12 + 4*(t >> 1)
            m, h = (vM0, vH0) if t == 1 else (vM1, vH1)
            p(f'v_permlane16_swap_b32 v{ob}, v{ob+2}\nv_permlane16_swap_b32 v{ob+1}, v{ob+3}')
            p(f'buffer_store_dwordx4 {v(ob,4)}, v{h}, {srd(SWS)}, s{sHALO} offen sc1')
            T.store([f'buffer_store_dwordx4 {v(ob,4)}, v{m}, {srd(SWS)}, s{sCB} offen'])
    T.ts('p3_done')
    publish_and_poll(T, 3, 20, halo=True, mid=lambda: (w3_tread(n_a, n_b), c3_mfma(n_a, n_b)))
    adma_run(T, adma_k_issue(T, HR), 4, ahead=cfg.a_ahead, after={2: lambda: w3_go(p, vA3, n_a + n_b, 0, cfg.wpre, cfg.wthr), 3: lambda: w3_go(p, vA3, n_a + n_b, cfg.wpre, n_c, cfg.wthr)})
    T.ts('a4_done')
    T.prio(cfg.px)
    vU, vU2 = 4, 2
    p(f's_min_u32 s{sT+6}, s{sJ}, 3\ns_mul_i32 s{sT+7}, s{sJ}, 5\ns_add_u32 s{sT+6}, s{sT+6}, s{sT+7}\ns_lshl_b32 s{sT+6}, s{sT+6}, 2\ns_lshl_b32 s{sT+7}, s{sW}, 1\ns_add_u32 s{sT+6}, s{sT+6}, s{sT+7}')
    pub_addr(p, vU, 10, sT + 6)
    p(f'''
    s_cmp_lt_u32 s{sJ}, 3
    s_cselect_b32 s{sT+6}, 4, 2
    s_cmp_lt_u32 s{sW}, s{sT+6}
    s_cselect_b32 s{sT+6}, 0, {OOB:#x}
    v_or_b32 v{vU2}, s{sT+6}, v{vU}
    v_add_u32 v3, {ROW3 - ROWA}, v3
    s_add_u32 s{sL+1}, s{sCB}, {W_U + 8192:#x}
    s_add_u32 s{sL+2}, s{sCB}, {W_U + 16384:#x}
    s_mul_i32 s{sL+3}, s{sQC}, 11
    s_add_u32 s{sL+3}, s{sL+3}, s{sW}
    s_waitcnt vmcnt(0)
    ''')
    T.ts('w4_done')
    T.bar()
    T.prio(cfg.pc)
    w3_tread(n_a + n_b, n_c)
    T.bar()
    c3_mfma(n_a + n_b, n_c)
    vA5, vPK, vF5, vRC, TP = 6, 18, 44, 56, (30, 60)
    tk = {}
    def rd5(i):
        t, j = divmod(i, 16)
        p(f'ds_read_b128 {v(vF5+4*(i%3),4)}, v{vLIN} offset:{t*16384 + j*1024}'); tk[i] = p.lg
    T.bar()
    for i in range(3): rd5(i)
    for t in range(4):
        for j in range(16):
            i = 16*t + j
            if t > 0 and j == 8: T.bar()
            p.wait_lg(tk[i])
            for s in range(3):
                p(f'v_mfma_f32_16x16x32_bf16 {v(vA5+4*s,4)}, {v(WR+12*j+4*s,4)}, {v(vF5+4*(i%3),4)}, {"0" if j == 0 else v(vA5+4*s,4)}')
            if j + 3 < 16: rd5(i + 3)
        T.bar()
        p(f'ds_read_b128 {v(vRC,4)}, v3 offset:{t*256}'); tkr = p.lg
        if t < 3:
            for i in range(3): rd5(16*t + 16 + i)
        p.wait_lg(tkr)
        for s in range(3):
            a = vA5 + 4*s
            H = ((0, TP[0]), (2, TP[1]))
            for h, x in H: p(f'v_pk_fma_f32 {v(a+h,2)}, {v(vC3+4*s+h,2)}, {v(vRC,2)}, {v(a+h,2)} op_sel_hi:[1,0,1]')
            for h, x in H: p(f'v_pk_mul_f32 {v(x,2)}, {v(a+h,2)}, {v(a+h,2)}')
            for h, x in H: p(f'v_pk_fma_f32 {v(x,2)}, {v(x,2)}, {v(vRC+2,2)}, {v(vRC,2)} op_sel:[0,0,1] op_sel_hi:[1,0,1]')
            for h, x in H: p(f'v_pk_mul_f32 {v(x,2)}, {v(x,2)}, {v(a+h,2)}')
            for h, x in H: p(f'v_exp_f32 v{x}, v{x}\nv_exp_f32 v{x+1}, v{x+1}')
            for h, x in H: p(f'v_pk_fma_f32 {v(x,2)}, {v(x,2)}, {v(vRC+2,2)}, {v(vRC+2,2)} op_sel:[0,1,1] op_sel_hi:[1,1,1]')
            for h, x in H: p(f'v_rcp_f32 v{x}, v{x}\nv_rcp_f32 v{x+1}, v{x+1}')
            for h, x in H: p(f'v_pk_mul_f32 {v(x,2)}, {v(x,2)}, {v(a+h,2)}')
            o = vPK + 4*s + 2*(t & 1)
            p(f'v_cvt_pk_bf16_f32 v{o}, v{TP[0]}, v{TP[0]+1}\nv_cvt_pk_bf16_f32 v{o+1}, v{TP[1]}, v{TP[1]+1}')
        if t & 1:
            for s in range(3):
                ob = vPK + 4*s
                p(f'v_permlane16_swap_b32 v{ob}, v{ob+2}\nv_permlane16_swap_b32 v{ob+1}, v{ob+3}')
            T.store([f'buffer_store_dwordx4 {v(vPK+4*s,4)}, v{vU2 if s == 2 else vU}, {srd(SWS)}, s{sCB if s == 0 else sL+s} offen offset:{(t>>1)*512}' for s in range(3)], always_sc1=True)
        T.bar()
    T.ts('p5_done')
    publish_and_poll(T, 5, 6)
    def u_issue(c):
        p(f'''
        s_cmp_ge_u32 s{sL+3}, 43
        s_cselect_b32 s{sT+2}, 43, 0
        s_sub_u32 s{sL+3}, s{sL+3}, s{sT+2}
        s_lshl_b32 s{sT}, s{sL+3}, 12
        s_add_u32 s{sT}, s{sT}, s{sCB}
        s_add_u32 s{sL+3}, s{sL+3}, 4
        s_add_u32 m0, s{sW4K}, {(c % 9)*16384}
        ''')
        for i in range(4):
            p(f'buffer_load_dwordx4 v{vLIN}, {srd(SWS)}, s{sT} offen offset:{i*1024} sc1 lds')
    adma_run(T, u_issue, 11, ahead=cfg.u_ahead)
    T.ts('a6_done')
    return T

def team_b(cfg):
    T = Team(cfg, 'B', vTS=15, vFA=13, vFB=14, vFT=8)
    p = T.p
    NB = 96
    vLIN = 1
    vWA, vTR, vTR2 = 40, 3, 4
    T.prio(cfg.pc)
    p(f'''
    v_lshlrev_b32 v{vLIN}, 4, v0
    s_lshl_b32 s{sT}, s{sR}, 6
    s_lshl_b32 s{sT+1}, s{sW}, 2
    s_add_u32 s{sT}, s{sT}, s{sT+1}
    s_sub_u32 s{sT}, s{sT}, 16
    s_lshl_b32 s{sT}, s{sT}, 10
    v_add_u32 v2, s{sT}, v{vLIN}
    v_mov_b32 v{T.vFB}, {WF + 16}
    s_lshl_b32 s{sT}, s{sW}, 2
    v_add_u32 v{T.vFA}, s{sT}, v{T.vFB}
    v_and_b32 v5, 7, v0
    v_lshlrev_b32 v5, 4, v5
    s_lshl_b32 s{sT}, s{sW}, 9
    s_add_u32 s{sT}, s{sT}, {XS}
    v_add_u32 v5, s{sT}, v5
    s_lshl_b32 s{sT}, s{sJ}, 3
    s_mov_b64 s[{sM}:{sM+1}], 0xff
    s_lshl_b64 s[{sM}:{sM+1}], s[{sM}:{sM+1}], s{sT}
    v_mov_b32 v6, 0x3f803f80
    s_mov_b32 s{sT+4}, {fbits(1/512)}
    s_mov_b32 s{sT+5}, {fbits(1e-5)}
    ''')
    kernarg_wait(T)
    mk_srd(p, SA, P_X, 2048 * 1024)
    tokx = []
    for t in range(5):
        for i in range(4):
            n = NB + (4*t + i)*8
            p(f'buffer_load_dwordx4 {v(n+4,4)}, v2, {srd(SA)}, 0 offen offset:{i*1024}')
        tokx.append(p.vm)
        if t < 4: p('v_add_u32 v2, 0x4000, v2')
    ws_src_addr(p, vWA, 7)
    tr_addr1(p, vTR, 7, WST)
    p(f'''
    s_lshl_b32 s{sT}, s{sQC}, 4
    v_subrev_u32 v12, s{sT}, v0
    v_and_b32 v12, 63, v12
    s_and_b32 s{sT}, s{sW}, 1
    s_lshl_b32 s{sT}, s{sT}, 2
    v_xor_b32 v7, s{sT}, v12
    v_and_b32 v7, 7, v7
    v_lshlrev_b32 v7, 4, v7
    v_lshl_add_u32 v44, v12, 8, v7
    s_lshr_b32 s{sT}, s{sW}, 1
    s_lshl_b32 s{sT}, s{sT}, 7
    v_add_u32 v44, s{sT}, v44
    v_xor_b32 v45, 16, v44
    v_xor_b32 v46, 32, v44
    v_xor_b32 v47, 48, v44
    v_lshlrev_b32 v12, 4, v12
    v_add_u32 v12, {VEC3}, v12
    ''')
    p(TAGCALC)
    T.ts('issued')
    for t in range(5):
        p.wait_vm(tokx[t])
        if t == 0: T.ts('x0')
        if t == 4: T.ts('x4')
        S, Q = 16, 20
        for k in range(4):
            for i in range(4):
                x = NB + (4*t + i)*8 + 4 + k
                p(f'v_dot2_f32_bf16 v{S+i}, v{x}, v6, {"0" if k == 0 else f"v{S+i}"}')
                p(f'v_dot2_f32_bf16 v{Q+i}, v{x}, v{x}, {"0" if k == 0 else f"v{Q+i}"}')
        if t > 0:
            p(f's_mov_b64 exec, s[{sM}:{sM+1}]')
            for i in range(4):
                p(f'ds_write_b128 v5, {v(NB + (4*t+i)*8 + 4, 4)} offset:{(t-1)*2048 + i*128}')
            p('s_mov_b64 exec, -1')
        xreduce4_multi(p, [(S, S+1, S+2, S+3), (Q, Q+1, Q+2, Q+3)])
        if t > 0: p('s_waitcnt lgkmcnt(0)')
        chain = []
        for sh in (8, 4, 2, 1):
            chain.append([f'v_add_f32_dpp v{r}, v{r}, v{r} row_ror:{sh} row_mask:0xf bank_mask:0xf' for r in (S, Q)])
        chain += [[f'v_mul_f32 v{S}, s{sT+4}, v{S}'], [f'v_mul_f32 v{S+1}, v{S}, v{S}'], [f'v_fma_f32 v{Q}, v{Q}, s{sT+4}, -v{S+1}'],
                  [f'v_max_f32 v{Q}, 0, v{Q}'], [f'v_add_f32 v{Q}, s{sT+5}, v{Q}'], [f'v_rsq_f32 v{Q}, v{Q}'], [f'v_mul_f32_e64 v{S}, -v{S}, v{Q}']]
        for i in range(4): chain.append([f'v_readlane_b32 s{sL+2*i}, v{Q}, {16*i}', f'v_readlane_b32 s{sL+2*i+1}, v{S}, {16*i}'])
        fill = []
        for i in range(4):
            n = NB + (4*t + i)*8
            for k in range(4): fill.append([f'v_lshlrev_b32 v{n+2*k}, 16, v{n+4+k}', f'v_and_b32 v{n+2*k+1}, 0xffff0000, v{n+4+k}'])
        for a, b in zip(fill, chain + [[]]):
            for x in a + b: p(x)
        for i in range(4):
            n = NB + (4*t + i)*8
            for h in range(0, 8, 2):
                p(f'v_pk_fma_f32 {v(n+h,2)}, {v(n+h,2)}, s[{sL+2*i}:{sL+2*i+1}], s[{sL+2*i}:{sL+2*i+1}] op_sel:[0,0,1] op_sel_hi:[1,0,1]')
    T.ts('ln_done')
    p(f'v_mov_b32 v7, {WF}')
    T.wait_flags(7, cfg.modf_at, sleep=2)
    T.prio(cfg.pl)
    T.ts('gath')
    p(f's_mul_i32 s{sT+1}, s{sW}, 1536\ns_add_u32 s{sT+1}, s{sT+1}, {MODL}\nv_lshlrev_b32 v5, 3, v0\nv_add_u32 v5, s{sT+1}, v5')
    T.poll([f'buffer_load_dwordx4 {v(16+4*i,4)}, v{vLIN}, {srd(SWS)}, s{sW3K} offen offset:{i*1024} sc1' for i in range(3)],
           [f'v_xor_b32 v{32+i}, s{sTAG}, v{17+2*i}' for i in range(6)] +
           ['v_or3_b32 v32, v32, v33, v34', 'v_or3_b32 v32, v32, v35, v36', 'v_or_b32 v32, v32, v37', 'v_cmp_ne_u32 vcc, 0, v32'], sleep=8)
    p('ds_write2_b32 v5, v16, v18 offset0:0 offset1:1\nds_write2_b32 v5, v20, v22 offset0:128 offset1:129\nv_add_u32 v5, 1024, v5\nds_write2_b32 v5, v24, v26 offset0:0 offset1:1')
    p('s_waitcnt lgkmcnt(0)'); T.tsync()
    T.ts('modf')
    vZ, vH, vGB, vGA, vG, vSB = 48, 64, 80, 84, 88, 92
    p(f'''
    v_add_u32 v5, {MODL}, v{vLIN}
    ds_read_b128 v[20:23], v5
    ds_read_b128 v[28:31], v5 offset:1024
    v_and_b32 v6, 15, v0
    v_lshrrev_b32 v2, 4, v0
    v_lshlrev_b32 v6, 7, v6
    v_lshl_add_u32 v6, v2, 3, v6
    s_lshl_b32 s{sT}, s{sW}, 5
    s_add_u32 s{sT}, s{sT}, {XS}
    v_add_u32 v6, s{sT}, v6
    ''')
    for t in range(4): p(f'ds_read_b64 {v(vH+2*t,2)}, v6 offset:{t*2048}')
    T.wait_flags(7, 4)
    WOR, W2R, W4R = 128, 192, 84
    tok = {}
    def w_issue(ldsbase, nk):
        p(f's_add_u32 m0, s{sW4K}, {ldsbase}')
        for i in range(4):
            p(f'buffer_load_dwordx4 v{vWA+i}, {srd(SW)}, s{sKOFF} offen offset:{i*1024} lds')
        if nk == 16: p(f's_add_u32 s{sKOFF}, s{sKOFF}, 0x20000\ns_and_b32 s{sKOFF}, s{sKOFF}, 0x7ffff')
        else: p(f's_add_u32 s{sKOFF}, s{sKOFF}, 0x20000\ns_cmp_ge_u32 s{sKOFF}, {nk*32768}\ns_cselect_b32 s{sT}, {nk*32768}, 0\ns_sub_u32 s{sKOFF}, s{sKOFF}, s{sT}')
    def issue1(c):
        if c == 0:
            mk_srd(p, SW, P_WO, 512 * 1024); p(f's_lshl_b32 s{sKOFF}, s{sQC}, 17\ns_lshl_b32 s{sT}, s{sW}, 15\ns_add_u32 s{sKOFF}, s{sKOFF}, s{sT}')
        elif c % 4 == 0:
            ptr = (P_WO, P_W2, P_W1)[c // 4]
            p(f's_mov_b32 s{SW}, s{ptr}\ns_mov_b32 s{SW+1}, s{ptr+1}')
        w_issue(WST + (c % 4)*16384, 16); tok[c] = p.vm
    def tread(dst, ldsoff, vt, nks=4):
        for k in range(nks):
            o = ldsoff + k*4096
            for h in range(2):
                p(f'ds_read_b64_tr_b16 {v(dst + 4*k + 2*h, 2)}, v{vt[o >> 16]} offset:{(o & 0xffff) + h*256}')
    issue1(0)
    unpack8(p, 16, 20); unpack8(p, 24, 28)
    for h in range(0, 8, 2): p(f'v_pk_add_f32 {v(24+h,2)}, {v(24+h,2)}, 1.0 op_sel_hi:[1,0]')
    for k in range(4): p(f'v_cvt_pk_bf16_f32 v{36+k}, v{24+2*k}, v{25+2*k}')
    unpack8(p, 24, 36)
    for t in range(5):
        if t == 4:
            for i in range(4): p(f'v_add_u32 v{44+i}, 0x10000, v{44+i}')
        for i in range(4):
            n = NB + (4*t + i)*8
            for h in range(0, 8, 2): p(f'v_pk_fma_f32 {v(n+h,2)}, {v(n+h,2)}, {v(24+h,2)}, {v(16+h,2)}')
            for k in range(4): p(f'v_cvt_pk_bf16_f32 v{n+k}, v{n+2*k}, v{n+2*k+1}')
            p(f'ds_write_b128 v{44+i}, {v(n,4)} offset:{(t % 4)*16384}')
    p('s_waitcnt lgkmcnt(0)')
    T.ts('h0w')
    T.bar()
    T.ts('h0')
    for c in range(1, cfg.d1): issue1(c)
    vAD, vST, vSTX, vSA = 5, 6, 7, 2
    vACC = 32
    X = 96
    bg = Prog()
    q = p
    def extras(p):
        L = q.label('ep')
        for t in range(4): unpack4(p, vZ + 4*t, vH + 2*t)
        p(f'''
        v_mov_b32 v{X}, {FASTW}
        ds_read_b32 v{X}, v{X}
        v_add_u32 v{X+1}, {MODL}, v{vLIN}
        ds_read_b128 v[20:23], v{X+1} offset:3072
        ds_read_b128 v[28:31], v{X+1} offset:4096
        v_lshrrev_b32 v{X+2}, 4, v0
        v_lshlrev_b32 v{X+2}, 3, v{X+2}
        s_lshl_b32 s{sT+1}, s{sOCT}, 4
        s_add_u32 s{sT+1}, s{sT+1}, {MODL}
        v_add_u32 v{X+2}, s{sT+1}, v{X+2}
        ds_read_b64 v[32:33], v{X+2} offset:2048
        ds_read_b64 v[34:35], v{X+2} offset:3072
        ds_read_b64 v[36:37], v{X+2} offset:4096
        ds_read_b64 v[38:39], v{X+2} offset:5120
        s_waitcnt lgkmcnt(0)
        v_readfirstlane_b32 s{sFAST}, v{X}
        ''')
        for dst, src in ((vGA, 32), (vSB, 34), (vG, 36), (vGB, 38)): unpack4(p, dst, src)
        for i in range(4): p(f'v_add_f32 v{vG+i}, 1.0, v{vG+i}')
        p(f'v_cvt_pk_bf16_f32 v36, v{vG}, v{vG+1}\nv_cvt_pk_bf16_f32 v37, v{vG+2}, v{vG+3}')
        unpack4(p, vG, 36)
        unpack8(p, 32, 28)
        for i in range(8): p(f'v_add_f32 v{32+i}, 1.0, v{32+i}')
        for k in range(4): p(f'v_cvt_pk_bf16_f32 v{28+k}, v{32+2*k}, v{33+2*k}')
        for k in range(4): p(f'v_mov_b32 v{24+k}, 0x3f803f80')
        p('ds_write_b128 v12, v[28:31]\nds_write_b128 v12, v[20:23] offset:1024\nds_write_b128 v12, v[24:27] offset:2048')
        unpack8(p, X, 28); unpack8(p, X + 8, 20)
        p(f'v_mov_b32 v32, v{X}\nv_mul_f32 v33, v{X}, v{X}\nv_mul_f32 v34, v{X}, v{X+8}\nv_mov_b32 v35, v{X+8}\nv_mul_f32 v36, v{X+8}, v{X+8}')
        for k in range(1, 8):
            p(f'v_add_f32 v32, v32, v{X+k}\nv_fmac_f32 v33, v{X+k}, v{X+k}\nv_fmac_f32 v34, v{X+k}, v{X+8+k}\nv_add_f32 v35, v35, v{X+8+k}\nv_fmac_f32 v36, v{X+8+k}, v{X+8+k}')
        row_allreduce(p, range(32, 37))
        group_allreduce(p, range(32, 37), range(X, X + 5))
        for k in range(5): p(f'v_mul_f32 v{32+k}, {fbits(1/512)}, v{32+k}')
        for k in range(5): p(f'v_readfirstlane_b32 s{sC5+k}, v{32+k}')
        p(f'v_and_b32 v16, 15, v0\nv_lshrrev_b32 v17, 4, v0\nv_lshlrev_b32 v16, 4, v16\nv_lshl_add_u32 v{vAD}, v17, 10, v16')
        pub_addr(p, vST, 18, sOCT)
        pub_addr(p, vSTX, 18, sOCT, tilemajor=True)
        p(f's_lshl_b32 s{sT+1}, s{sW}, 2\ns_add_u32 s{sT+1}, s{sT+1}, {SACC}\ns_waitcnt lgkmcnt(0)\nv_add_u32 v12, s{sT+1}, v{vLIN}')
        p(f's_lshl_b32 s{sT+1}, s{sW}, 8\nv_add_u32 v16, s{sT+1}, v16\nv_lshl_add_u32 v{vSA}, v17, 12, v16')
    extras(bg)
    items = bg.items
    cuts = [len(items) * k // 8 for k in range(9)]
    for c in range(9):
        if c < 8: p.wait_vm(tok[c])
        p('s_waitcnt lgkmcnt(0)'); T.ts(f'r_w{c}'); T.bar(); T.ts(f'r_s{c}')
        for cc in range(c + cfg.d1, (c + cfg.d1 + 1) if c < 8 else 12):
            if cc < 12: issue1(cc)
        if c < 8:
            tread((WOR, W2R)[c // 4] + 16*(c % 4), (c % 4)*16384, [vTR])
            T.prio(cfg.px)
            for it in items[cuts[c]:cuts[c+1]]: p(it.text)
            T.prio(cfg.pl)
    L = p.label('ep')
    p(f's_or_b32 s{sT}, s2, s{sW}\ns_cmp_lg_u32 s{sT}, 0\ns_cbranch_scc1 {L}\nv_mov_b32 v16, {EPOCH}\nv_mov_b32 v17, s{sTAG}\nbuffer_store_dword v17, v16, {srd(SWS)}, 0 offen sc1\n{L}:')
    adma_k_prep(p, W_Y)
    for i in range(4): p(f'v_mov_b32 v{8+i}, v{vWA+i}')
    vWA = 8
    p(f's_add_u32 s{sT+6}, s{sCB}, {W_Y:#x}\ns_waitcnt vmcnt(0)')
    T.ts('w1_done')
    T.bar(); T.prio(cfg.pc); T.bar()
    FR = [16, 20, 24, 28, 112, 116, 120, 124]
    gemm_kmajor(T, 16, WOR, vACC, FR, [vAD])
    T.ts('p2_mm')
    for t in range(4):
        for h in (0, 2): p(f'v_pk_fma_f32 {v(vZ+4*t+h,2)}, {v(vACC+4*t+h,2)}, {v(vGA+h,2)}, {v(vZ+4*t+h,2)}')
    for t in range(4):
        for h in (0, 2): p(f'v_pk_mul_f32 {v(vACC+4*t+h,2)}, {v(vZ+4*t+h,2)}, {v(vG+h,2)}')
    def pack_swap(src):
        for t in range(4):
            p(f'v_cvt_pk_bf16_f32 v{16+2*t}, v{src+4*t}, v{src+4*t+1}\nv_cvt_pk_bf16_f32 v{17+2*t}, v{src+4*t+2}, v{src+4*t+3}')
        p('v_permlane16_swap_b32 v16, v18\nv_permlane16_swap_b32 v17, v19\nv_permlane16_swap_b32 v20, v22\nv_permlane16_swap_b32 v21, v23')
    pack_swap(vACC)
    T.store([f'buffer_store_dwordx4 v[16:19], v{vST}, {srd(SWS)}, s{sT+6} offen', f'buffer_store_dwordx4 v[20:23], v{vST}, {srd(SWS)}, s{sT+6} offen offset:512'], always_sc1=True)
    def stat(q, a_of, b_of):
        for t in range(4):
            x = X + 2*t; a = a_of(t)
            if b_of is None: p(f'v_pk_add_f32 {v(x,2)}, {v(a,2)}, {v(a+2,2)}')
            else: p(f'v_pk_mul_f32 {v(x,2)}, {v(a,2)}, {v(b_of(t),2)}')
        if b_of is not None:
            for t in range(4): p(f'v_pk_fma_f32 {v(X+2*t,2)}, {v(a_of(t)+2,2)}, {v(b_of(t)+2,2)}, {v(X+2*t,2)}')
        for t in range(4): p(f'v_add_f32 v{X+8+4*q+t}, v{X+2*t}, v{X+2*t+1}')
    def stats_out(n):
        xreduce4_multi(p, [tuple(X + 8 + 4*q + k for k in range(4)) for q in range(n)])
        for q in range(n): p(f'ds_write_b32 v12, v{X+8+4*q} offset:{q*1024}')
    zt = lambda t: vZ + 4*t
    yt = lambda t: vACC + 4*t
    for q_, (a, b) in enumerate(((zt, None), (zt, zt), (yt, None), (yt, yt), (yt, lambda t: vG), (yt, lambda t: vSB))):
        stat(q_, a, b)
    stats_out(6)
    T.ts('p2_done')
    def pub_st(n, shift, base):
        def f():
            p(f'v_add_u32 v28, {SACC}, v{vLIN}')
            for q in range(n): p(f'ds_read_b128 {v(X+4*q,4)}, v28 offset:{q*1024}')
            p(f'v_mov_b32 v19, s{sTAG}\nv_mov_b32 v23, s{sTAG}\ns_lshl_b32 s{sT}, s{sJ}, {shift}\ns_add_u32 s{sT}, s{sT}, s{sCB}\ns_add_u32 s{sT}, s{sT}, {base:#x}\ns_waitcnt lgkmcnt(0)')
            for q in range(n): p(f'v_add_f32 v{X+4*q}, v{X+4*q}, v{X+4*q+1}\nv_add_f32 v{X+4*q+2}, v{X+4*q+2}, v{X+4*q+3}')
            for q in range(n): p(f'v_add_f32 v{16 + q + q//3}, v{X+4*q}, v{X+4*q+2}')
            T.store([f'buffer_store_dwordx4 {v(16+4*i,4)}, v{vLIN}, {srd(SWS)}, s{sT} offen offset:{i*1024}' for i in range(2 if n == 6 else 1)])
        return f
    n_a, n_b, n_c = cfg.w3split
    vA3 = 40
    publish_and_poll(T, 2, 24, extra_w1=pub_st(6, 11, W_ST2), mid=lambda: (w3_setup(p, 29, vA3), p(f's_add_u32 s{sT+6}, s{sCB}, {W_ST2:#x}')))
    G = 128
    st2_loads = [f'buffer_load_dwordx4 {v(G+4*i,4)}, v{vSA}, {srd(SWS)}, s{sT+6} offen offset:{i*1024} sc1' for i in range(4)]
    tks = {}
    def st2_issue():
        for i in st2_loads: p(i)
        tks[0] = p.vm
    def st2_calc():
        p.wait_vm(tks[0])
        chk = [f'v_xor_b32 v{X+i}, s{sTAG}, v{G+4*i+3}' for i in range(4)] + [f'v_or3_b32 v{X}, v{X}, v{X+1}, v{X+2}', f'v_or_b32 v{X}, v{X}, v{X+3}', f'v_cmp_ne_u32 vcc, 0, v{X}']
        T.poll(st2_loads, chk, first_issued=True)
        K6 = (0, 1, 2, 4, 5, 6)
        for k in K6: p(f'v_add_f32 v{G+k}, v{G+k}, v{G+8+k}')
        group_allreduce(p, [G + k for k in K6], range(X, X + 6))
        cG, cGG, cGS, cS, cSS = (f's{sC5+k}' for k in range(5))
        for k in K6: p(f'v_mul_f32 v{G+k}, {fbits(1/512)}, v{G+k}')
        mu, ezz, ey, eyy, eyg, eys = G, G+1, G+2, G+4, G+5, G+6
        p(f'''
        v_fma_f32 v{X}, -v{mu}, v{mu}, v{ezz}
        v_fma_f32 v{ey}, -v{mu}, {cG}, v{ey}
        v_max_f32 v{X}, 0, v{X}
        v_fma_f32 v{eys}, -v{mu}, {cGS}, v{eys}
        v_add_f32 v{X}, {fbits(1e-5)}, v{X}
        v_mul_f32 v{X+1}, {cGG}, v{mu}
        v_rsq_f32 v{X}, v{X}
        v_fma_f32 v{X+1}, v{eyg}, -2.0, v{X+1}
        v_fma_f32 v{eyy}, v{X+1}, v{mu}, v{eyy}
        v_fma_f32 v{ey}, v{ey}, v{X}, {cS}
        v_mul_f32 v{eyy}, v{eyy}, v{X}
        v_fma_f32 v{eyy}, v{eys}, 2.0, v{eyy}
        v_fma_f32 v{eyy}, v{eyy}, v{X}, {cSS}
        v_fma_f32 v{eyy}, -v{ey}, v{ey}, v{eyy}
        v_max_f32 v{eyy}, 0, v{eyy}
        v_add_f32 v{eyy}, {fbits(1e-5)}, v{eyy}
        v_rsq_f32 v{X+6}, v{eyy}
        v_mul_f32_e64 v{X+1}, -v{mu}, v{X}
        v_and_b32 v{X+8}, 0xfff, v{vSA}
        v_mul_f32 v{X+4}, v{X+6}, v{X}
        v_mul_f32 v{X+5}, v{X+6}, v{X+1}
        v_mul_f32_e64 v{X+7}, -v{X+6}, v{ey}
        v_lshrrev_b32 v{X+9}, 1, v{X+8}
        v_add_u32 v{X+8}, {ROWA}, v{X+8}
        v_add_u32 v{X+9}, {ROWH}, v{X+9}
        ds_write_b128 v{X+8}, {v(X+4,4)}
        ds_write_b64 v{X+9}, {v(X,2)}
        ''')
    adma_run(T, adma_k_issue(T, [vLIN]*4), 4, ahead=cfg.a_ahead, after={0: st2_issue, 2: lambda: w3_go(p, vA3, n_a, 0, cfg.wpre, cfg.wthr), 3: st2_calc})
    p('s_waitcnt lgkmcnt(0)')
    T.bar()
    T.ts('st3')
    w3_go(p, vA3, n_a, cfg.wpre, n_b, cfg.wthr)
    T.prio(cfg.px)
    p(f'v_and_b32 v16, 15, v0\nv_lshlrev_b32 v16, 3, v16\nv_add_u32 v16, {ROWH}, v16')
    for t in range(4): p(f'ds_read_b64 {v(24+2*t,2)}, v16 offset:{t*128}')
    p('s_waitcnt lgkmcnt(0)')
    for t in range(4):
        for i in range(4): p(f'v_fma_f32 v{vH+4*t+i}, v{vZ+4*t+i}, v{24+2*t}, v{25+2*t}')
        for i in range(4): p(f'v_fma_f32 v{vH+4*t+i}, v{vH+4*t+i}, v{vG+i}, v{vSB+i}')
    tr_addr1(p, vTR, 16, PARK)
    p(f'''
    v_add_u32 v{vTR2}, 0x10000, v{vTR}
    s_add_u32 s{sT+6}, s{sCB}, {W_X1:#x}
    s_add_u32 s{sT+7}, s{sCB}, {W_X1 + 32768:#x}
    s_add_u32 s{sL}, s{sW}, s{sQC}
    s_and_b32 s{sL}, s{sL}, 3
    s_lshl_b32 s{sL}, s{sL}, 12
    s_add_u32 s{sL}, s{sL}, s{sT+6}
    s_add_u32 s{sL+1}, s{sL}, 16384
    s_add_u32 s{sL+2}, s{sL}, 32768
    s_add_u32 s{sL+3}, s{sL}, 49152
    v_lshrrev_b32 v16, 4, v0
    v_lshlrev_b32 v16, 11, v16
    v_sub_u32 v{vSA}, v{vSA}, v16
    s_waitcnt vmcnt(0)
    ''')
    T.ts('w3_done')
    T.bar(); T.prio(cfg.pc); T.bar()
    gemm_kmajor(T, 16, W2R, vACC, FR, [vAD])
    T.ts('p4_mm')
    for t in range(4):
        for h in (0, 2): p(f'v_pk_add_f32 {v(vH+4*t+h,2)}, {v(vH+4*t+h,2)}, {v(vACC+4*t+h,2)}')
    pack_swap(vH)
    T.store([f'buffer_store_dwordx4 v[16:19], v{vSTX}, {srd(SWS)}, s{sT+6} offen', f'buffer_store_dwordx4 v[20:23], v{vSTX}, {srd(SWS)}, s{sT+7} offen'])
    ht = lambda t: vH + 4*t
    stat(0, ht, None); stat(1, ht, ht)
    stats_out(2)
    T.ts('p4_done')
    def mid4():
        mk_srd(p, SW, P_W4, 1376 * 1024)
        p(f's_mul_i32 s{sKOFF}, s{sQC}, 11\ns_add_u32 s{sKOFF}, s{sKOFF}, s{sW}\ns_lshl_b32 s{sKOFF}, s{sKOFF}, 15\ns_add_u32 s{sT+6}, s{sCB}, {W_ST4:#x}')
        for i in range(16): p(f'v_fma_f32 v{vZ+i}, v{vH+i}, v{vGB + (i & 3)}, v{vZ+i}')
    publish_and_poll(T, 4, 24, extra_w1=pub_st(2, 10, W_ST4), mid=mid4)
    iss = adma_k_issue(T, [vLIN]*4)
    iss(0); t0 = p.vm; iss(1); p.wait_vm(t0); T.bar()
    GS = 64
    st4_loads = [f'buffer_load_dwordx4 {v(GS+4*i,4)}, v{vSA}, {srd(SWS)}, s{sT+6} offen offset:{i*1024} sc1' for i in range(2)]
    for i in st4_loads: p(i)
    t1 = p.vm
    iss(2); iss(3); t3 = p.vm
    p.wait_vm(t1)
    T.poll(st4_loads, [f'v_xor_b32 v16, s{sTAG}, v{GS+3}', f'v_xor_b32 v17, s{sTAG}, v{GS+7}', 'v_or_b32 v16, v16, v17', 'v_cmp_ne_u32 vcc, 0, v16'], first_issued=True)
    tok = {}
    def issue5(c):
        w_issue(PARK + (c % 5)*16384, 43); tok[c] = p.vm
    issue5(0)
    p(f'v_add_f32 v{GS}, v{GS}, v{GS+4}\nv_add_f32 v{GS+1}, v{GS+1}, v{GS+5}')
    group_allreduce(p, (GS, GS + 1), (16, 17))
    p(f'''
    v_mul_f32 v16, {fbits(-1/512)}, v{GS}
    v_mul_f32 v{GS+1}, {fbits(1/512)}, v{GS+1}
    v_fma_f32 v{GS+1}, -v16, v16, v{GS+1}
    v_max_f32 v{GS+1}, 0, v{GS+1}
    v_add_f32 v{GS+1}, {fbits(1e-5)}, v{GS+1}
    v_rsq_f32 v{GS}, v{GS+1}
    v_sqrt_f32 v19, v{GS+1}
    v_and_b32 v20, 0x7ff, v{vSA}
    v_mul_f32 v17, {fbits(K1)}, v{GS}
    v_mul_f32 v18, v{GS}, v{GS}
    v_mul_f32 v18, v18, v{GS}
    v_mul_f32 v18, {fbits(K2)}, v18
    v_add_u32 v20, {ROW3}, v20
    ds_write_b128 v20, v[16:19]
    ''')
    p.wait_vm(t3)
    issue5(1)
    p('s_waitcnt lgkmcnt(0)')
    T.bar()
    T.ts('a5_done')
    for c in range(2, cfg.d5): issue5(c)
    mk_srd(p, SA, P_OUT, 2048 * 1024)
    p(f'''
    v_add_u32 v6, 0x10000, v{vAD}
    v_add_u32 v7, 0x20000, v{vAD}
    v_and_b32 v2, 31, v0
    s_lshl_b32 s{sT+1}, s{sR}, 6
    v_add_u32 v2, s{sT+1}, v2
    v_lshlrev_b32 v2, 10, v2
    v_lshrrev_b32 v12, 5, v0
    v_add_u32 v12, s{sOCT}, v12
    v_lshl_add_u32 v2, v12, 4, v2
    s_mov_b32 s{sT+7}, 0x8000
    ''')
    for c in range(11):
        p.wait_vm(tok[c]); p('s_waitcnt lgkmcnt(0)')
        if c == 10: T.ts('w5_done')
        T.bar()
        if c + cfg.d5 < 11: issue5(c + cfg.d5)
        tread(W4R + 16*c, (c % 5)*16384, [vTR, vTR2], nks=4 if c < 10 else 3)
    p('s_waitcnt lgkmcnt(0)')
    T.prio(cfg.pc); T.bar()
    gemm_kmajor(T, 43, W4R, vACC, [16, 20, 24, 28, 64, 68, 72, 76], [vAD, 6, 7], slot_of=lambda c: c % 9)
    T.ts('p6_mm')
    for t in range(4):
        for h in (0, 2): p(f'v_pk_fma_f32 {v(vZ+4*t+h,2)}, {v(vACC+4*t+h,2)}, {v(vGB+h,2)}, {v(vZ+4*t+h,2)}')
    pack_swap(vZ)
    p(f'buffer_store_dwordx4 v[16:19], v2, {srd(SA)}, 0 offen\nbuffer_store_dwordx4 v[20:23], v2, {srd(SA)}, s{sT+7} offen')
    T.ts('end')
    return T

def build(cfg):
    A = team_a(cfg); B = team_b(cfg)
    assert A.nbar == B.nbar, (A.nbar, B.nbar)
    P = Prog()
    if cfg.ts:
        P(f's_memrealtime s[{sTS}:{sTS+1}]\ns_memtime s[96:97]\ns_waitcnt lgkmcnt(0)\nv_mov_b32 v15, s{sTS}\nv_mov_b32 v63, s{sTS}')
    P(f'''
    s_load_dwordx16 s[8:23], s[0:1], 0
    s_load_dwordx8 s[24:31], s[0:1], 64
    s_load_dwordx2 s[32:33], s[0:1], 96
    s_cmp_ge_u32 s2, 256
    s_cbranch_scc1 L_exit
    v_lshrrev_b32 v1, 6, v0
    v_and_b32 v0, 63, v0
    v_readfirstlane_b32 s3, v1
    s_getreg_b32 s{sXCC}, hwreg(HW_REG_XCC_ID)
    s_lshr_b32 s4, s2, 3
    s_and_b32 s{sJ}, s4, 7
    s_cmp_lg_u32 s3, 7
    s_cbranch_scc1 L_nopf
    s_getpc_b64 s[{SB}:{SB+1}]
    L_pc:
    s_mov_b32 s{SB+2}, L_codeend-L_pc
    s_mov_b32 s{SB+3}, 0x20000
    s_lshl_b32 s5, s{sJ}, 13
    v_lshlrev_b32 v1, 7, v0
    buffer_load_dword v95, v1, {srd(SB)}, s5 offen
    L_nopf:
    s_lshr_b32 s{sQC}, s4, 3
    s_and_b32 s5, s2, 7
    s_lshl_b32 s5, s5, 2
    s_add_u32 s{sR}, s5, s{sQC}
    s_add_u32 s{sCB}, s{sR}, 1
    s_lshl_b32 s{sCB}, s{sCB}, 20
    s_add_u32 s{sFA}, s{sCB}, {W_FLAG:#x}
    s_and_b32 s{sW}, s3, 3
    s_mul_i32 s{sW3K}, s{sW}, 3072
    s_lshl_b32 s{sW4K}, s{sW}, 12
    s_lshl_b32 s{sOCT}, s{sJ}, 2
    s_add_u32 s{sOCT}, s{sOCT}, s{sW}
    s_lshl_b32 s{sOCT}, s{sOCT}, 1
    s_mov_b32 s{sBUD}, 200000
    s_mov_b32 s{sFAST}, 0
    v_lshlrev_b32 v1, 2, v0
    v_add_u32 v1, {WF}, v1
    v_mov_b32 v2, 0
    ds_write_b32 v1, v2
    s_cmp_ge_u32 s3, 4
    s_cbranch_scc1 L_teamB
    ''')
    def tail(T):
        p = T.p
        if cfg.ts:
            p(f's_memtime s[{sTS}:{sTS+1}]\ns_waitcnt lgkmcnt(0)\ns_sub_u32 s{sTS}, s{sTS}, s96\nv_writelane_b32 v{T.vTS}, s{sTS}, 62')
            T.nts = 61; T.ts('x'); T.tsnames.pop()
            p(f's_lshl_b32 s{sT}, s2, 3\ns_add_u32 s{sT}, s{sT}, s3\ns_lshl_b32 s{sT}, s{sT}, 8\ns_add_u32 s{sT}, s{sT}, {TSBASE:#x}\nv_lshlrev_b32 v1, 2, v0\nbuffer_store_dword v{T.vTS}, v1, {srd(SWS)}, s{sT} offen')
        p('s_endpgm')
    tail(A); tail(B)
    hdr = open('cdna_kernels/' + NAME + '.s.ref').read().split('\n')
    top = [l for l in hdr if l.startswith(';') and '@launch' not in l and not l.startswith('; Override') and not l.startswith('; grid=')]
    s = '\n'.join(top) + f'\n; @launch grid=(256,1,1) block=(512,1,1) lds={LDS_BYTES}\n'
    s += f'.amdgcn_target "amdgcn-amd-amdhsa--gfx950"\n.text\n.globl {NAME}_kernel\n.p2align 8\n.type {NAME}_kernel,@function\n{NAME}_kernel:\n'
    s += P.render() + A.p.render() + 'L_teamB:\n' + B.p.render() + 'L_exit:\n    s_endpgm\nL_codeend:\n'
    s += f'''.section .rodata,"a"
.p2align 6
.amdhsa_kernel {NAME}_kernel
  .amdhsa_next_free_vgpr 256
  .amdhsa_next_free_sgpr 102
  .amdhsa_accum_offset 256
  .amdhsa_group_segment_fixed_size 0
  .amdhsa_kernarg_size 104
  .amdhsa_user_sgpr_count 2
  .amdhsa_user_sgpr_kernarg_segment_ptr 1
  .amdhsa_system_sgpr_workgroup_id_x 1
.end_amdhsa_kernel
'''
    return s, A.tsnames, B.tsnames

if __name__ == '__main__':
    cfg = Cfg()
    out = sys.argv[1]
    for a in sys.argv[2:]:
        k, val = a.split('=', 1)
        assert hasattr(cfg, k), k
        setattr(cfg, k, eval(val))
    s, ta, tb = build(cfg)
    if cfg.ts:
        s = f'; TSA {" ".join(ta)}\n; TSB {" ".join(tb)}\n' + s
    open(out, 'w').write(s)
```

```python
import sys, struct
from dsl import Prog

NAME = 'adaLN_cond__sliding_local_dilated__mixer_s_mlp__prompt'
CS = 0x100000
MODF, EPOCH, TSBASE = 0x0, 0x4000, 34 * CS
W_O, W_Y, W_HB, W_HALO, W_X1, W_U = 0x00000, 0x10000, 0x00000, 0x40000, 0x10000, 0x00000
W_ST2, W_ST4, W_MODP, W_FLAG = 0x20000, 0x24000, 0x20000, 0x90000
WS_BYTES = 35 * CS
OOB = 0x80000000
ABUF, PARK, WST, MISC = 0, 65536, 81920, 147456
XS = MISC
VEC3, ROWA, ROWH, ROW3 = XS, XS + 3072, XS + 4096, XS + 4608
MODL = MISC + 8192
SACC = MODL
WF = MISC + 14336
FASTW = WF + 32
GRAM = WF + 64
C3L = WF + 1024
LDS_BYTES = 163840
P_X, P_QKV, P_WO, P_W1, P_W2, P_W3, P_W4, P_C, P_WMOD, P_OUT, P_WS = 8, 10, 12, 16, 18, 20, 22, 24, 26, 28, 32
SW, SWS, SA, SB = 36, 40, 44, 48
sW, sJ, sR, sQC, sTAG, sFAST, sCB, sBUD, sXCC, sW3K, sW4K, sKOFF = range(52, 64)
sT = 64
sM = 72
sL = 80
sOCT, sHALO, sFV, sFA = 90, 91, 92, 93
sC5 = 85
sTS = 98
sROT, sROT3, sROT4, sROT2 = 4, 5, 6, 7
A3L = MODL
LOG2E = 1.4426950408889634
K1 = -2.0 * 0.7978845608028654 * LOG2E
K2 = K1 * 0.044715
def fbits(x): return '0x%08x' % struct.unpack('<I', struct.pack('<f', x))[0]
def srd(i): return f's[{i}:{i+3}]'
def v(a, n=1): return f'v{a}' if n == 1 else f'v[{a}:{a+n-1}]'

class Cfg:
    ts = False
    tsring = False
    tsbar = None
    tscyc = False
    tsteam = 'AB'
    force_slow = False
    w3split = (4, 6, 6)
    pt = None
    qpre = 1
    pa1 = 1
    pmod = 1
    qd = 4
    modf_at = 4
    st2_at = 0
    p1c = 3
    wpos = 1
    hpos = (-1, 1)
    pe = 3
    ah = (3, 3, 2)
    stpos = 0
    ds_at = None
    bg1 = 60
    pl, pc, px = 2, 1, 0
    u_ahead = 3
    ubars = None
    a_ahead = 3
    d1 = 3
    p5x, p5y = 8, 8
    p5c = 3
    w5pre = 1
    ctouch = True
    e5 = (2, 2, 1)
    d5 = 4
    woa = True
    p1bars = ((1, 0), (1, 12), (2, 6), (3, 2), (4, 0))
    pf0 = 1
    pf2 = 11
    pf1 = 6
    rx, rq, rj3 = 0, 0, 4
    rx3, rq3 = 0, 0
    rx4, rq4, rj4 = 0, 0, 11
    xnt = 'nt'
    xb = (12, 8)
    pa0, pb0 = 3, 2
    diag_spin = 0
    wpre = 2
    wthr = 9

def mk_srd(p, s, ptr, nbytes):
    p(f's_mov_b32 s{s}, s{ptr}\ns_mov_b32 s{s+1}, s{ptr+1}\ns_mov_b32 s{s+2}, {nbytes:#x}\ns_mov_b32 s{s+3}, 0x20000')

class Team:
    def __init__(self, cfg, name, vTS, vFA, vFB, vFT):
        self.p = Prog(); self.cfg = cfg; self.name = name
        self.p.nlab = 1000 if name == 'B' else 0
        self.nts = 0; self.vTS = vTS
        self.sync_n = 0
        self.vFA, self.vFB, self.vFT = vFA, vFB, vFT
        self.nbar = 0
        self.tsnames = []
    def ts(self, name):
        if not self.cfg.ts or self.nts == 60: return
        if name.startswith('r_') and not self.cfg.tsring: return
        if self.cfg.tsbar and name[0] not in '<>x': return
        if self.cfg.tscyc and name != 'x':
            self.p(f's_memtime s[{sTS}:{sTS+1}]\ns_waitcnt lgkmcnt(0)\ns_sub_u32 s{sTS}, s{sTS}, s96\nv_writelane_b32 v{self.vTS}, s{sTS}, {self.nts}')
        else:
            self.p(f's_memrealtime s[{sTS}:{sTS+1}]\ns_waitcnt lgkmcnt(0)\nv_writelane_b32 v{self.vTS}, s{sTS}, {self.nts}')
        self.tsnames.append(name); self.nts += 1
    def bar(self):
        tb = self.cfg.tsbar
        on = tb and tb[0] <= self.nbar < tb[1] and self.name in self.cfg.tsteam
        if on: self.ts(f'<{self.nbar}')
        self.p('s_barrier')
        if on: self.ts(f'>{self.nbar}')
        self.nbar += 1
    def arrive(self):
        self.sync_n += 1
        self.p(f'v_mov_b32 v{self.vFT}, {self.sync_n}\nds_write_b32 v{self.vFA}, v{self.vFT}')
    def wait_flags(self, addr_reg, n, sleep=1):
        p = self.p; t = self.vFT; L = p.label('wf')
        p(f'{L}:\nds_read_b128 {v(t,4)}, v{addr_reg}\ns_sub_u32 s{sBUD}, s{sBUD}, 1\ns_cbranch_scc1 {L}x\ns_waitcnt lgkmcnt(0)')
        p(f'v_min3_u32 v{t}, v{t}, v{t+1}, v{t+2}\nv_min_u32 v{t}, v{t}, v{t+3}\nv_cmp_gt_u32 vcc, {n}, v{t}\ns_cbranch_vccz {L}y\ns_sleep {sleep}\ns_branch {L}')
        p(f'{L}x:\ns_mov_b32 s{sBUD}, 0\ns_waitcnt lgkmcnt(0)\n{L}y:')
    def tsync(self):
        self.arrive(); self.wait_flags(self.vFB, self.sync_n)
    def prio(self, n):
        self.p(f's_setprio {n}')
    def store(self, ins, always_sc1=False):
        p = self.p
        if always_sc1:
            for i in ins: p(i + ' sc1')
            return
        L = p.label('st')
        p(f's_cmp_eq_u32 s{sFAST}, 0\ns_cbranch_scc0 {L}f')
        vm0 = p.vm
        for i in ins: p(i + ' sc1')
        p(f's_branch {L}e\n{L}f:')
        p.vm = vm0
        for i in ins: p(i)
        p(f'{L}e:')
    def poll(self, loads, check, sleep=0, first_issued=False):
        p = self.p; L = p.label('pl')
        vm0 = p.vm
        if first_issued: p(f's_branch {L}c')
        p(f'{L}:')
        for i in loads: p(i)
        p(f's_sub_u32 s{sBUD}, s{sBUD}, 1\ns_cbranch_scc1 {L}x\ns_waitcnt vmcnt(0)')
        if first_issued: p(f'{L}c:')
        for i in check: p(i)
        if sleep:
            p(f's_cbranch_vccz {L}y\ns_sleep {sleep}\ns_branch {L}')
        else:
            p(f's_cbranch_vccnz {L}\ns_branch {L}y')
        p(f'{L}x:\ns_mov_b32 s{sBUD}, 0\ns_waitcnt vmcnt(0)\n{L}y:')
        p.vm = vm0

TAGCALC = f's_waitcnt lgkmcnt(0)\ns_mul_i32 s{sTAG}, s{sTAG}, 1664525\ns_add_u32 s{sTAG}, s{sTAG}, 1013904223'

def w_src_addr(p, dst, t, pitch, colbytes_s):
    p(f'''
    v_lshrrev_b32 v{t}, 3, v0
    s_lshl_b32 s{sT}, s{sW}, 3
    v_add_u32 v{t}, s{sT}, v{t}
    v_mul_u32_u24 v{dst}, {pitch}, v{t}
    v_bfe_u32 v{t}, v0, 4, 1
    s_and_b32 s{sT}, s{sW}, 1
    s_lshl_b32 s{sT}, s{sT}, 1
    v_or_b32 v{t}, s{sT}, v{t}
    v_lshlrev_b32 v{t}, 1, v{t}
    v_xor_b32 v{t}, v{t}, v0
    v_and_b32 v{t}, 7, v{t}
    v_lshlrev_b32 v{t}, 4, v{t}
    v_add3_u32 v{dst}, v{dst}, v{t}, s{colbytes_s}
    ''')

def tr_addr3(p, dst, t, base, gstride=3072):
    p(f'''
    v_lshrrev_b32 v{t}, 4, v0
    v_mul_u32_u24 v{dst}, {gstride}, v{t}
    v_bfe_u32 v{t}, v0, 3, 2
    v_xor_b32 v{t}, s{sW}, v{t}
    v_lshl_add_u32 v{dst}, v{t}, 5, v{dst}
    v_bfe_u32 v{t}, v0, 2, 2
    v_lshl_add_u32 v{dst}, v{t}, 7, v{dst}
    v_and_b32 v{t}, 3, v0
    v_lshl_add_u32 v{dst}, v{t}, 3, v{dst}
    ''')
    if base: p(f'v_add_u32 v{dst}, {base}, v{dst}')

def tr_addr1(p, dst, t, base):
    tr_addr3(p, dst, t, base, 1024)

def ws_src_addr(p, dst, t):
    p(f'''
    v_lshrrev_b32 v{t}, 3, v0
    v_lshlrev_b32 v{dst}, 10, v{t}
    v_and_b32 v{t}, 2, v{t}
    v_xor_b32 v{t}, v{t}, v0
    v_and_b32 v{t}, 7, v{t}
    v_lshl_add_u32 v{dst}, v{t}, 4, v{dst}
    s_lshl_b32 s{sT}, s{sJ}, 7
    v_add_u32 v{dst}, s{sT}, v{dst}
    v_xor_b32 v{dst+1}, 64, v{dst}
    v_add_u32 v{dst+2}, {2*7168}, v{dst}
    v_add_u32 v{dst+3}, {3*7168}, v{dst+1}
    v_add_u32 v{dst+1}, 7168, v{dst+1}
    ''')

def pf_share(p, sr, ptr, nbytes, t, dst, flags=''):
    share = -(-(nbytes // 128) // 256)
    mk_srd(p, sr, ptr, nbytes)
    p(f's_mul_i32 s{sT+6}, s2, {share*128}\nv_min_u32 v{t}, {share-1}, v0\nv_lshlrev_b32 v{t}, 7, v{t}\nbuffer_load_dword v{dst}, v{t}, {srd(sr)}, s{sT+6} offen {flags}')

def koff_next(p, stepbytes, nsteps):
    p(f's_add_u32 s{sKOFF}, s{sKOFF}, {stepbytes}\ns_cmp_ge_u32 s{sKOFF}, {stepbytes*nsteps}\ns_cselect_b32 s{sKOFF}, 0, s{sKOFF}')

def xreduce4(p, a, b, c, d, op='v_add_f32'):
    p(f'v_permlane32_swap_b32 v{a}, v{c}\nv_permlane32_swap_b32 v{b}, v{d}\n{op} v{a}, v{a}, v{c}\n{op} v{b}, v{b}, v{d}')
    p(f'v_permlane16_swap_b32 v{a}, v{b}\n{op} v{a}, v{a}, v{b}')

def xreduce4_multi(p, quads):
    for a, b, c, d in quads: p(f'v_permlane32_swap_b32 v{a}, v{c}\nv_permlane32_swap_b32 v{b}, v{d}')
    for a, b, c, d in quads: p(f'v_add_f32 v{a}, v{a}, v{c}\nv_add_f32 v{b}, v{b}, v{d}')
    for a, b, c, d in quads: p(f'v_permlane16_swap_b32 v{a}, v{b}')
    for a, b, c, d in quads: p(f'v_add_f32 v{a}, v{a}, v{b}')

def group_allreduce(p, regs, tmps):
    for sw in ('v_permlane32_swap_b32', 'v_permlane16_swap_b32'):
        for r, t in zip(regs, tmps): p(f'v_mov_b32 v{t}, v{r}')
        for r, t in zip(regs, tmps): p(f'{sw} v{r}, v{t}')
        for r, t in zip(regs, tmps): p(f'v_add_f32 v{r}, v{r}, v{t}')

def gemm_kmajor(T, nk, vW, vACC, frs, vAD, slot_of=None, bars=None, late=None):
    p = T.p; nfr = len(frs)
    steps = [(j, t) for j in range(nk) for t in range(4) if not (late and late(j, t))]
    barat = set()
    for i, (j, t) in enumerate(steps):
        if (i == 0 or steps[i-1][0] // 4 != j // 4) and (bars is None or j // 4 in bars): barat.add(i)
    if late:
        barat.add(len(steps))
        lt = [(j, t) for j in range(nk) for t in range(4) if late(j, t)]
        a = [x for x in lt if x[1] == lt[0][1]]; b = [x for x in lt if x[1] != lt[0][1]]
        steps += [x for pr in zip(a, b) for x in pr]
    def lds_off(j, t):
        c, jj = divmod(j, 4)
        s = slot_of(c) if slot_of else c
        return s * 16384 + jj * 4096 + t * 256
    tok = {}
    def rd(i):
        if i in barat: T.bar()
        j, t = steps[i]; o = lds_off(j, t)
        p(f'ds_read_b128 {v(frs[i % nfr], 4)}, v{vAD[o >> 16]} offset:{o & 0xffff}'); tok[i] = p.lg
    n = len(steps)
    seen = set()
    for i in range(nfr): rd(i)
    for i in range(0, n, 2):
        p.wait_lg(tok[i + 1])
        for ii in (i, i + 1):
            j, t = steps[ii]
            c = v(vACC + 4*t, 4) if t in seen else '0'
            seen.add(t)
            p(f'v_mfma_f32_16x16x32_bf16 {v(vACC+4*t,4)}, {v(vW+4*j,4)}, {v(frs[ii % nfr],4)}, {c}')
            if ii + nfr < n: rd(ii + nfr)

def adma_run(T, issue, nch, ahead=2, after=None, bars=None):
    p = T.p; tok = {}
    bars = list(range(nch)) if bars is None else list(bars)
    nxt = 0
    for gi, g0 in enumerate(bars):
        last = (bars[gi + 1] if gi + 1 < len(bars) else nch) - 1
        while nxt < nch and nxt < last + ahead:
            issue(nxt); tok[nxt] = p.vm; nxt += 1
        if after and gi - 1 in after: after[gi - 1]()
        p.wait_vm(tok[last]); T.bar()
    if after and len(bars) - 1 in after: after[len(bars) - 1]()

def adma_k_prep(p, base, rot=sROT):
    for c in range(4):
        p(f's_add_u32 s{sT}, s{rot}, s{sW}\ns_add_u32 s{sT}, s{sT}, {4*c}\ns_and_b32 s{sT}, s{sT}, 15\ns_lshl_b32 s{sT}, s{sT}, 12\ns_add_u32 s{sT}, s{sT}, s{sCB}\ns_add_u32 s{sL+c}, s{sT}, {base:#x}')

def adma_k_issue(T, vOFFs, masks=None):
    p = T.p
    def issue(c):
        p(f's_add_u32 m0, s{sW4K}, {ABUF + c*16384}')
        half = 'exec_hi' if c & 1 else 'exec_lo'
        if masks: p(f's_mov_b32 {half}, s{masks + c}')
        for i in range(4):
            p(f'buffer_load_dwordx4 v{vOFFs[c]}, {srd(SWS)}, s{sL+c} offen offset:{i*1024} sc1 lds')
        if masks: p(f's_mov_b32 {half}, -1')
    return issue

def publish_and_poll(T, ph, t, extra_w1=None, mid=None, mid2=None):
    p = T.p
    p(f's_lshl_b32 s{sT}, s{sJ}, 2\nv_mov_b32 v{t}, s{sT}\ns_add_u32 s{sFV}, s{sTAG}, {ph}\nv_mov_b32 v{t+1}, s{sFV}\nv_and_b32 v{t+3}, 7, v0\nv_lshlrev_b32 v{t+3}, 2, v{t+3}')
    p('s_waitcnt vmcnt(0) lgkmcnt(0)')
    T.ts(f'vm_{ph}')
    T.bar()
    T.prio(T.cfg.pl)
    L = p.label('pub')
    p(f's_cmp_lg_u32 s{sW}, 0\ns_cbranch_scc1 {L}n')
    T.store([f'buffer_store_dword v{t+1}, v{t}, {srd(SWS)}, s{sFA} offen'])
    if extra_w1 is not None:
        p(f's_branch {L}e\n{L}n:\ns_cmp_lg_u32 s{sW}, 1\ns_cbranch_scc1 {L}e')
        extra_w1()
        p(f'{L}e:')
    else:
        p(f'{L}n:')
    T.ts(f'B1_{ph}')
    if mid: mid()
    ld = f'buffer_load_dword v{t+2}, v{t+3}, {srd(SWS)}, s{sFA} offen sc1'
    chk = [f'v_subrev_u32 v{t+2}, s{sFV}, v{t+2}', f'v_cmp_lt_u32 vcc, 7, v{t+2}']
    if mid2:
        L = p.label('pol')
        p(f's_cmp_lg_u32 s{sW}, 0\ns_cbranch_scc1 {L}\n{ld}\n{L}:')
        mid2()
    L = p.label('pol')
    p(f's_cmp_lg_u32 s{sW}, 0\ns_cbranch_scc1 {L}')
    if mid2: p('s_waitcnt vmcnt(0)')
    T.poll([ld], chk, first_issued=bool(mid2))
    p(f'{L}:')
    T.bar()
    T.ts(f'B2_{ph}')

def gelu_pairs(p, x, tmp, out):
    for h in (0, 2): p(f'v_pk_mul_f32 {v(tmp+h,2)}, {v(x+h,2)}, {v(x+h,2)}')
    for h in (0, 2): p(f'v_pk_fma_f32 {v(tmp+h,2)}, {v(tmp+h,2)}, s[{sT+4}:{sT+5}], s[{sT+4}:{sT+5}] op_sel:[0,0,1] op_sel_hi:[1,0,1]')
    for h in (0, 2): p(f'v_pk_mul_f32 {v(tmp+h,2)}, {v(tmp+h,2)}, {v(x+h,2)}')
    for i in range(4): p(f'v_exp_f32 v{tmp+i}, v{tmp+i}')
    for h in (0, 2): p(f'v_pk_add_f32 {v(tmp+h,2)}, {v(tmp+h,2)}, 1.0 op_sel_hi:[1,0]')
    for i in range(4): p(f'v_rcp_f32 v{tmp+i}, v{tmp+i}')
    for h in (0, 2): p(f'v_pk_mul_f32 {v(tmp+h,2)}, {v(tmp+h,2)}, {v(x+h,2)}')
    p(f'v_cvt_pk_bf16_f32 v{out}, v{tmp}, v{tmp+1}\nv_cvt_pk_bf16_f32 v{out+1}, v{tmp+2}, v{tmp+3}')

def pub_addr(p, dst, t, oct_s, tilemajor=False):
    if not tilemajor:
        p(f'v_lshrrev_b32 v{t}, 5, v0\nv_add_u32 v{t}, s{oct_s}, v{t}\nv_lshlrev_b32 v{t}, 10, v{t}\nv_and_b32 v{dst}, 31, v0\nv_lshl_add_u32 v{dst}, v{dst}, 4, v{t}')
    else:
        p(f'v_lshrrev_b32 v{t}, 5, v0\nv_add_u32 v{t}, s{oct_s}, v{t}\nv_lshlrev_b32 v{t}, 8, v{t}\nv_and_b32 v{dst}, 15, v0\nv_lshl_add_u32 v{dst}, v{dst}, 4, v{t}\nv_bfe_u32 v{t}, v0, 4, 1\nv_lshl_add_u32 v{dst}, v{t}, 14, v{dst}')

def w3_setup(p, t, vA3):
    p(f's_min_u32 s{sT+6}, s{sJ}, 3\ns_mul_i32 s{sT+7}, s{sJ}, 5\ns_add_u32 s{sT+6}, s{sT+6}, s{sT+7}\ns_lshl_b32 s{sT+6}, s{sT+6}, 6')
    p(f's_cmp_lt_u32 s{sJ}, 3\ns_cselect_b32 s{sT+7}, 24, 20\ns_and_b32 s{sT}, s{sW}, 1\ns_lshl_b32 s{sT}, s{sT}, 2\nv_mov_b32 v{t+2}, {OOB:#x}')
    for s_ in range(3):
        p(f'''
        v_add_u32 v{t}, {64*s_}, v0
        v_mul_u32_u24 v{t+1}, 171, v{t}
        v_lshrrev_b32 v{t+1}, 12, v{t+1}
        v_mul_u32_u24 v{vA3+s_}, 24, v{t+1}
        v_sub_u32 v{t}, v{t}, v{vA3+s_}
        v_mul_u32_u24 v{vA3+s_}, 2752, v{t+1}
        v_and_b32 v{t+1}, 2, v{t+1}
        v_or_b32 v{t+1}, s{sT}, v{t+1}
        v_xor_b32 v{t}, v{t}, v{t+1}
        v_cmp_gt_u32 vcc, s{sT+7}, v{t}
        v_lshl_add_u32 v{vA3+s_}, v{t}, 4, v{vA3+s_}
        v_add_u32 v{vA3+s_}, s{sT+6}, v{vA3+s_}
        v_cndmask_b32_e64 v{vA3+s_}, v{t+2}, v{vA3+s_}, vcc
        ''')
        if s_ < 2: p(f's_sub_u32 s{sT+6}, s{sT+6}, 1024')

def tr_addr_w3(p, dst, t, base):
    p(f'''
    v_lshrrev_b32 v{t}, 4, v0
    v_mul_u32_u24 v{dst}, 3072, v{t}
    v_bfe_u32 v{t}, v0, 3, 2
    v_xor_b32 v{t}, s{sW}, v{t}
    v_lshl_add_u32 v{dst}, v{t}, 5, v{dst}
    v_bfe_u32 v{t}, v0, 2, 2
    v_mul_u32_u24 v{t}, 384, v{t}
    v_add_u32 v{dst}, v{dst}, v{t}
    v_and_b32 v{t}, 3, v0
    v_lshl_add_u32 v{dst}, v{t}, 3, v{dst}
    v_add_u32 v{dst}, {base}, v{dst}
    ''')

def a3_load(p, vA3, vLIN):
    p(f's_and_b32 s{sT}, s{sW}, 1\ns_lshl_b32 s{sT}, s{sT}, 10\ns_add_u32 s{sT}, s{sT}, {A3L}\nv_add_u32 v{vA3}, s{sT}, v{vLIN}\nds_read_b128 {v(vA3,4)}, v{vA3}')

def w3_go(p, vA3, first, c0, c1, thr):
    if c0 == 0:
        p(f's_mul_i32 s{sT}, s{sW}, {8*2752}\ns_add_u32 s{SW}, s{P_W3}, s{sT}\ns_addc_u32 s{SW+1}, s{P_W3+1}, 0\ns_sub_u32 s{SW+2}, {512*2752}, s{sT}')
        p(f's_add_u32 s{sT}, s{sROT3}, {first}\ns_and_b32 s{sT}, s{sT}, 15\ns_mul_i32 s{sKOFF}, s{sT}, {32*2752}')
    for c in range(c0, c1):
        if 3*c + 3 > thr: p(f's_waitcnt vmcnt({thr - 3})')
        p(f's_add_u32 m0, s{sW3K}, {PARK + c*12288}')
        for s in range(3):
            p(f'buffer_load_dwordx4 v{vA3+s}, {srd(SW)}, s{sKOFF} offen offset:{s*1024} lds')
        koff_next(p, 32 * 2752, 16)

CT = [True]
def code_touch(p, t, dst):
    if not CT[0]: return
    L = p.label('ct')
    p(f'''
    s_getpc_b64 s[{SB}:{SB+1}]
    {L}:
    s_sub_u32 s{SB}, s{SB}, {L}-L_pc
    s_subb_u32 s{SB+1}, s{SB+1}, 0
    s_mov_b32 s{SB+2}, L_codeend-L_pc
    s_mov_b32 s{SB+3}, 0x20000
    s_lshr_b32 s95, s2, 3
    s_lshl_b32 s95, s95, 2
    s_add_u32 s95, s95, s{sW}
    s_mul_i32 s95, s95, 384
    v_min_u32 v{t}, 2, v0
    v_lshlrev_b32 v{t}, 7, v{t}
    buffer_load_dword v{dst}, v{t}, {srd(SB)}, s95 offen
    ''')

def interleave(p, a, b):
    ia = ib = 0
    while ia < len(a) or ib < len(b):
        if ib >= len(b) or (ia < len(a) and ia * len(b) <= ib * len(a)):
            p(a[ia]); ia += 1
        else:
            p(b[ib]); ib += 1

def unpack8(p, dst, src):
    for k in range(4):
        p(f'v_lshlrev_b32 v{dst+2*k}, 16, v{src+k}\nv_and_b32 v{dst+2*k+1}, 0xffff0000, v{src+k}')

def unpack4(p, dst, src):
    p(f'v_lshlrev_b32 v{dst}, 16, v{src}\nv_and_b32 v{dst+1}, 0xffff0000, v{src}\nv_lshlrev_b32 v{dst+2}, 16, v{src+1}\nv_and_b32 v{dst+3}, 0xffff0000, v{src+1}')

def quad_allreduce(p, regs):
    for q in ('[1,0,3,2]', '[2,3,0,1]'):
        for r in regs:
            p(f'v_add_f32_dpp v{r}, v{r}, v{r} quad_perm:{q} row_mask:0xf bank_mask:0xf')

def row_allreduce(p, regs):
    for sh in (8, 4, 2, 1):
        for r in regs:
            p(f'v_add_f32_dpp v{r}, v{r}, v{r} row_ror:{sh} row_mask:0xf bank_mask:0xf')

def kernarg_wait(T):
    p = T.p
    p(f's_waitcnt lgkmcnt(0)\ns_load_dword s{sTAG}, s[{P_WS}:{P_WS+1}], {EPOCH:#x}')

def team_a(cfg):
    T = Team(cfg, 'A', vTS=63, vFA=60, vFB=61, vFT=56)
    p = T.p
    WR = 64
    vWA, vTR = 52, 53
    T.prio(3)
    p(f'''
    v_mov_b32 v{T.vFB}, {WF}
    s_lshl_b32 s{sT}, s{sW}, 2
    v_add_u32 v{T.vFA}, s{sT}, v{T.vFB}
    v_and_b32 v1, 15, v0
    v_lshrrev_b32 v2, 4, v0
    s_lshl_b32 s{sT}, s{sJ}, 6
    s_lshl_b32 s{sT+1}, s{sW}, 4
    s_add_u32 s{sT}, s{sT}, s{sT+1}
    v_lshl_add_u32 v3, v2, 2, s{sT}
    v_lshlrev_b32 v5, 1, v3
    v_mul_u32_u24 v3, 6144, v3
    s_mul_i32 s{sT}, s{sR}, 192
    v_lshlrev_b32 v4, 4, v1
    v_add3_u32 v3, v3, v4, s{sT}
    v_cmp_gt_u32 vcc, 12, v1
    v_mov_b32 v4, {OOB:#x}
    v_cndmask_b32_e64 v3, v4, v3, vcc
    ''')
    p(f's_mov_b32 s{sT+1}, 6144\ns_mov_b32 s{sT+2}, 12288\ns_mov_b32 s{sT+3}, 18432')
    kernarg_wait(T)
    mk_srd(p, SA, P_WMOD, 512 * 6144); mk_srd(p, SB, P_C, 1024)
    p(f'''
    buffer_load_dwordx2 v[6:7], v5, {srd(SB)}, 0 offen
    buffer_load_dwordx4 v[8:11], v3, {srd(SA)}, 0 offen nt
    buffer_load_dwordx4 v[12:15], v3, {srd(SA)}, s{sT+1} offen nt
    buffer_load_dwordx4 v[16:19], v3, {srd(SA)}, s{sT+2} offen nt
    buffer_load_dwordx4 v[20:23], v3, {srd(SA)}, s{sT+3} offen nt
    ''')
    tok_mod = p.vm
    T.bar()
    p('.SPLIT')
    mk_srd(p, SWS, P_WS, WS_BYTES)
    def dummy_st():
        p(f's_lshl_b32 s{sT+6}, s{sOCT}, 11\ns_add_u32 s{sT+6}, s{sT+6}, s{sCB}\nv_lshlrev_b32 v4, 4, v0')
        for i in range(4): p(f'buffer_store_dwordx4 v[252:255], v4, {srd(SWS)}, s{sT+6} offen offset:{i*1024} sc1')
    if cfg.ds_at == -1: dummy_st()
    mk_srd(p, SW, P_QKV, 512 * 3072)
    p(f's_lshl_b32 s{sT+7}, s{sJ}, 7\ns_mul_i32 s{sKOFF}, s{sROT}, {32*3072}')
    w_src_addr(p, vWA, 4, 3072, sT + 7)
    qoff = lambda ks: WST - 3*12288 + (ks % 8) * 12288
    tok = {}
    def q_issue(ks):
        p(f's_add_u32 m0, s{sW3K}, {qoff(ks)}')
        for s in range(3):
            p(f'buffer_load_dwordx4 v{vWA}, {srd(SW)}, s{sKOFF} offen offset:{s*1024} lds')
        tok[ks] = p.vm
        if ks < 15: koff_next(p, 32 * 3072, 16)
    def q_tread(k0, n):
        for ks in range(k0, k0 + n):
            for s in range(3):
                for h in range(2):
                    o = qoff(ks) + s*1024 + h*512
                    p(f'ds_read_b64_tr_b16 {v(WR + 12*ks + 4*s + 2*h, 2)}, v{vTR + (o >> 16)} offset:{o & 0xffff}')
    tk1 = {}
    def mod_stage1():
        p(TAGCALC)
        T.ts('issued')
        p.wait_vm(tok_mod)
        T.ts('modld')
        unpack4(p, 24, 6)
        for i in range(4): p(f'v_mul_f32 v{28+i}, {fbits(-LOG2E)}, v{24+i}')
        for i in range(4): p(f'v_exp_f32 v{28+i}, v{28+i}')
        for i in range(4): p(f'v_add_f32 v{28+i}, 1.0, v{28+i}')
        for i in range(4): p(f'v_rcp_f32 v{28+i}, v{28+i}')
        for i in range(4): p(f'v_mul_f32 v{24+i}, v{24+i}, v{28+i}')
        p('v_cvt_pk_bf16_f32 v6, v24, v25\nv_cvt_pk_bf16_f32 v7, v26, v27')
        unpack4(p, 24, 6)
        for i in range(4):
            unpack8(p, 40, 8 + 4*i)
            sel = f'op_sel:[0,{i&1}{"" if i == 0 else ",0"}] op_sel_hi:[1,{i&1}{"" if i == 0 else ",1"}]'
            for k in range(4):
                if i == 0: p(f'v_pk_mul_f32 {v(32+2*k,2)}, {v(40+2*k,2)}, v[24:25] {sel}')
                else: p(f'v_pk_fma_f32 {v(32+2*k,2)}, {v(40+2*k,2)}, {v(24 + (i & 2),2)}, {v(32+2*k,2)} {sel}')
        xreduce4_multi(p, [(32, 34, 36, 38), (33, 35, 37, 39)])
        p(f'v_mov_b32 v34, s{sTAG}\nv_mov_b32 v35, s{sXCC}\nbuffer_store_dwordx4 v[32:35], v48, {srd(SWS)}, s{sT+4} offen sc1')
        tk1[0] = p.vm
        T.ts('mod1')
    st2_loads = [f'buffer_load_dwordx4 {v(16+4*i,4)}, v10, {srd(SWS)}, s{sT+5} offen offset:{i*1024} sc1' for i in range(4)]
    def mod_stage2a():
        L = p.label('m2')
        p(f's_cmp_lg_u32 s{sW}, 0\ns_cbranch_scc1 {L}')
        vm0 = p.vm
        for x in st2_loads: p(x)
        p(f'{L}:'); p.vm = vm0
    def mod_stage2():
        L = p.label('m2')
        p(f's_cmp_lg_u32 s{sW}, 0\ns_cbranch_scc1 {L}')
        vm0 = p.vm
        T.poll(st2_loads,
               [f'v_xor_b32 v5, s{sTAG}, v18', f'v_xor_b32 v6, s{sTAG}, v22', f'v_xor_b32 v7, s{sTAG}, v26', f'v_xor_b32 v8, s{sTAG}, v30',
                'v_or3_b32 v5, v5, v6, v7', 'v_or_b32 v5, v5, v8', 'v_cmp_ne_u32 vcc, 0, v5', f's_and_b64 vcc, vcc, s[{sM+6}:{sM+7}]'], sleep=2, first_issued=True)
        p(f'''
        v_pk_add_f32 v[16:17], v[16:17], v[20:21]
        v_pk_add_f32 v[24:25], v[24:25], v[28:29]
        v_xor_b32 v5, s{sXCC}, v19
        v_pk_add_f32 v[16:17], v[16:17], v[24:25]
        v_xor_b32 v6, s{sXCC}, v23
        v_xor_b32 v7, s{sXCC}, v27
        v_add_f32_dpp v16, v16, v16 row_ror:8 row_mask:0xf bank_mask:0xf
        v_add_f32_dpp v17, v17, v17 row_ror:8 row_mask:0xf bank_mask:0xf
        v_xor_b32 v8, s{sXCC}, v31
        v_or3_b32 v5, v5, v6, v7
        ''')
        group_allreduce(p, (16, 17), (20, 21))
        p(f'''
        v_cvt_pk_bf16_f32 v16, v16, v17
        v_mov_b32 v17, s{sTAG}
        buffer_store_dwordx2 v[16:17], v15, {srd(SWS)}, 0 offen sc1
        v_or_b32 v5, v5, v8
        v_cmp_ne_u32 vcc, 0, v5
        s_and_b64 vcc, vcc, s[{sM+6}:{sM+7}]
        s_cselect_b32 s{sT+1}, 0, {0 if cfg.force_slow else 1}
        v_mov_b32 v5, s{sT+1}
        v_mov_b32 v6, {FASTW}
        ds_write_b32 v6, v5
        v_mov_b32 v5, 0
        buffer_load_dword v62, v5, {srd(SWS)}, s{sFA} offen sc1
        {L}:
        ''')
        p.vm = vm0
        T.ts('mod2')
    p(f'''
    v_lshl_add_u32 v3, v1, 2, v2
    v_mul_u32_u24 v4, 43, v3
    v_lshrrev_b32 v4, 8, v4
    v_mul_u32_u24 v5, 6, v4
    v_sub_u32 v3, v3, v5
    v_lshlrev_b32 v3, 4, v3
    v_lshl_add_u32 v3, v4, 12, v3
    v_cmp_gt_u32 vcc, 12, v1
    v_lshl_add_u32 v4, v1, 2, v2
    v_subrev_u32 v4, 48, v4
    v_lshrrev_b32 v5, 1, v4
    v_and_b32 v4, 1, v4
    v_lshlrev_b32 v4, 4, v4
    v_lshl_add_u32 v4, v5, 12, v4
    v_add_u32 v4, 96, v4
    v_cndmask_b32_e64 v48, v4, v3, vcc
    s_lshl_b32 s{sT+4}, s{sJ}, 2
    s_add_u32 s{sT+4}, s{sT+4}, s{sW}
    s_lshl_b32 s{sT+4}, s{sT+4}, 7
    s_add_u32 s{sT+4}, s{sT+4}, s{sCB}
    s_add_u32 s{sT+4}, s{sT+4}, {W_MODP:#x}
    ''')
    tr_addr3(p, vTR, 4, 0)
    p(f'v_add_u32 v{vTR+1}, 0x10000, v{vTR}\nv_add_u32 v{vTR+2}, 0x20000, v{vTR}')
    vWS = 42
    mod_stage1()
    T.prio(cfg.pa1)
    for ks in range(cfg.qpre): q_issue(ks)
    T.prio(cfg.px)
    p(f'''
    s_lshl_b32 s{sT+5}, s{sJ}, 12
    s_add_u32 s{sT+5}, s{sT+5}, s{sCB}
    s_add_u32 s{sT+5}, s{sT+5}, {W_MODP:#x}
    s_cmp_eq_u32 s{sW}, 0
    s_cselect_b32 s{sT+5}, s{sT+5}, {OOB:#x}
    s_mov_b32 s{sM+6}, 0x3f3f3f3f
    s_mov_b32 s{sM+7}, 0x3f3f3f3f
    v_lshlrev_b32 v10, 4, v0
    s_lshl_b32 s{sT}, s{sR}, 3
    s_add_u32 s{sT}, s{sT}, s{sJ}
    s_mul_i32 s{sT}, s{sT}, 6
    v_add_u32 v4, s{sT}, v0
    v_lshrrev_b32 v5, 8, v4
    v_lshlrev_b32 v15, 11, v5
    v_bfe_u32 v5, v4, 2, 6
    v_lshl_add_u32 v15, v5, 4, v15
    v_bfe_u32 v5, v4, 1, 1
    v_lshl_add_u32 v15, v5, 10, v15
    v_and_b32 v5, 1, v4
    v_lshl_add_u32 v15, v5, 3, v15
    v_mov_b32 v5, {OOB:#x}
    v_cmp_gt_u32 vcc, 6, v0
    v_cndmask_b32_e64 v15, v5, v15, vcc
    ''')
    vFR, ACC = 4, (16, 28)
    vKB, vVB, vSEL, vONE, vOUT, vAE, vAO, vST = 40, 58, 46, 50, 54, 1, 2, 3
    sBIAS, sSC = 84, 94
    p(f'''
    v_and_b32 v4, 15, v0
    v_lshrrev_b32 v5, 4, v0
    v_and_b32 v6, 1, v0
    v_cmp_eq_u32 s[{sM}:{sM+1}], 1, v6
    v_lshl_add_u32 v7, v5, 2, v6
    v_cmp_le_u32 s[{sM+2}:{sM+3}], v7, v4
    v_add_u32 v7, 2, v7
    v_cmp_le_u32 s[{sM+4}:{sM+5}], v7, v4
    v_mov_b32 v8, 0x0c0c0100
    v_mov_b32 v13, 0x01000c0c
    v_mov_b32 v14, 0x0c0c0302
    v_mov_b32 v11, 0x03020c0c
    v_mov_b32 v12, 0x0c0c0c0c
    v_cndmask_b32 v8, v8, v13, s[{sM}:{sM+1}]
    v_cndmask_b32 v14, v14, v11, s[{sM}:{sM+1}]
    v_cndmask_b32 v{vSEL}, v12, v8, s[{sM+2}:{sM+3}]
    v_cndmask_b32 v{vSEL+1}, v12, v14, s[{sM+4}:{sM+5}]
    v_cndmask_b32 v{vSEL+2}, v8, v12, s[{sM+2}:{sM+3}]
    v_cndmask_b32 v{vSEL+3}, v14, v12, s[{sM+4}:{sM+5}]
    v_xor_b32 v6, v4, v5
    v_and_b32 v6, 7, v6
    v_and_b32 v7, 8, v4
    v_or_b32 v6, v6, v7
    v_lshlrev_b32 v6, 4, v6
    v_lshl_add_u32 v{vAE}, v5, 8, v6
    v_xor_b32 v{vAO}, 64, v{vAE}
    s_cmp_eq_u32 s{sR}, 0
    s_cselect_b32 s{sBIAS}, {fbits(-1e30)}, 0
    s_mov_b32 s{sSC}, {fbits(0.25*LOG2E)}
    ''')
    pub_addr(p, vST, 4, sOCT)
    adma_k_prep(p, W_O)
    ws_src_addr(p, 40, 4)
    tr_addr1(p, 44, 4, WST)
    tr_addr_w3(p, 45, 4, PARK)
    def pf_small():
        p(f'''
        s_cmp_eq_u32 s{sW}, 0
        s_cselect_b64 s[{SA}:{SA+1}], s[{P_WO}:{P_WO+1}], s[{P_W1}:{P_W1+1}]
        s_cmp_eq_u32 s{sW}, 1
        s_cselect_b64 s[{SA}:{SA+1}], s[{P_W2}:{P_W2+1}], s[{SA}:{SA+1}]
        s_mov_b32 s{SA+2}, 0x80000
        s_lshl_b32 s{sT+6}, s2, 11
        v_min_u32 v4, 15, v0
        v_lshlrev_b32 v4, 7, v4
        buffer_load_dword v62, v4, {srd(SA)}, s{sT+6} offen
        ''')
    def pf_big():
        p(f'''
        s_cmp_lt_u32 s{sW}, 2
        s_cselect_b64 s[{SA}:{SA+1}], s[{P_W3}:{P_W3+1}], s[{P_W4}:{P_W4+1}]
        s_mov_b32 s{SA+2}, {1376*1024}
        s_and_b32 s{sT+6}, s{sW}, 1
        s_lshl_b32 s{sT+7}, s2, 1
        s_add_u32 s{sT+6}, s{sT+6}, s{sT+7}
        s_mul_i32 s{sT+6}, s{sT+6}, {22*128}
        v_min_u32 v4, 21, v0
        v_lshlrev_b32 v4, 7, v4
        buffer_load_dword v62, v4, {srd(SA)}, s{sT+6} offen
        ''')
    assert cfg.qd <= 4
    p.wait_vm(tok[cfg.st2_at] if cfg.st2_at >= 0 else tk1[0])
    T.prio(cfg.pa0)
    T.ts('ack1')
    for x in st2_loads: p(x)
    tst2 = p.vm
    for ks in range(cfg.qpre, cfg.qd): q_issue(ks)
    p.wait_vm(tst2)
    mod_stage2()
    for i in range(16):
        p.wait_vm(tok[i])
        if i % 2 == 0 and i >= 2:
            T.wait_flags(T.vFB, i // 2)
        if i + cfg.qd < 16: q_issue(i + cfg.qd)
        if i == cfg.pf1: pf_small(); code_touch(p, 4, 62)
        if i == cfg.pf2: pf_big()
        if i == cfg.ds_at: dummy_st()
        if i == cfg.pt:
            p(f's_lshl_b32 s{sT+6}, s{sOCT}, 11\ns_add_u32 s{sT+6}, s{sT+6}, s{sCB}\nv_min_u32 v4, 31, v0\nv_lshlrev_b32 v4, 7, v4\nbuffer_load_dword v62, v4, {srd(SWS)}, s{sT+6} offen sc1')
        if i % 2 == 0 and i >= 2:
            q_tread(i - 2, 2)
        if i % 2 == 1 and (i < 15 or cfg.woa):
            p('s_waitcnt lgkmcnt(0)'); T.arrive(); T.ts(f'r_a{i}')
        if i == 14:
            p(f'v_mov_b32 v4, {FASTW}\nds_read_b32 v4, v4\ns_waitcnt lgkmcnt(0)\nv_readfirstlane_b32 s{sFAST}, v4')
    def wo_issue(c):
        p(f's_add_u32 m0, s{sW4K}, {WST + c*16384}\ns_sub_u32 s{sT}, s{sL+c}, s{sCB}\ns_lshl_b32 s{sT}, s{sT}, 3')
        for k in range(4): p(f'buffer_load_dwordx4 v{40+k}, {srd(SW)}, s{sT} offen offset:{k*1024} lds')
    if cfg.woa:
        mk_srd(p, SW, P_WO, 512 * 1024)
        T.wait_flags(T.vFB, 8)
        q_tread(14, 2)
        wo_issue(0); wo_issue(1)
        p('s_waitcnt lgkmcnt(0)')
    T.ts('wq_done')
    T.bar()
    T.prio(cfg.pc)
    T.ts('h0')
    T.prio(cfg.p1c)
    tk = {}
    NF = 3
    def rd(i):
        t, j = divmod(i, 16)
        if i == 64:
            p(f'v_add_u32 v{vAE}, 0x10000, v{vAE}\nv_add_u32 v{vAO}, 0x10000, v{vAO}')
        p(f'ds_read_b128 {v(vFR+4*(i%NF),4)}, v{vAO if j & 1 else vAE} offset:{(t % 4)*16384 + j*1024}'); tk[i] = p.lg
    def attn(t):
        Q, K, V = ACC[t & 1], ACC[t & 1] + 4, ACC[t & 1] + 8
        cur, prv = 2*(t & 1), 2*((t+1) & 1)
        E = [f'v_cvt_pk_bf16_f32 v{vKB+cur}, v{K}, v{K+1}', f'v_cvt_pk_bf16_f32 v{vKB+cur+1}, v{K+2}, v{K+3}']
        if t > 0: E += [f'v_cvt_pk_bf16_f32 v{Q}, v{Q}, v{Q+1}', f'v_cvt_pk_bf16_f32 v{Q+1}, v{Q+2}, v{Q+3}']
        E += [f'v_cvt_pk_bf16_f32 v{vVB+cur}, v{V}, v{V+1}', f'v_cvt_pk_bf16_f32 v{vVB+cur+1}, v{V+2}, v{V+3}']
        if t == 0: return E
        odd, m0, m1 = f's[{sM}:{sM+1}]', f's[{sM+2}:{sM+3}]', f's[{sM+4}:{sM+5}]'
        E += [f'v_mfma_f32_16x16x16_bf16 {v(K,4)}, {v(vKB+cur,2)}, {v(Q,2)}, 0',
              f'v_mfma_f32_16x16x16_bf16 {v(V,4)}, {v(vKB+prv,2)}, {v(Q,2)}, 0', 4,
              f'v_cndmask_b32 v{K}, v{K}, v{K+1}, {odd}', f'v_cndmask_b32 v{K+2}, v{K+2}, v{K+3}, {odd}',
              f'v_cndmask_b32 v{V}, v{V}, v{V+1}, {odd}', f'v_cndmask_b32 v{V+2}, v{V+2}, v{V+3}, {odd}']
        if t == 1: E += [f'v_add_f32 v{V}, s{sBIAS}, v{V}', f'v_add_f32 v{V+2}, s{sBIAS}, v{V+2}']
        a, b = Q + 2, Q + 3
        E += [f'v_cndmask_b32 v{Q}, v{V}, v{K}, {m0}', f'v_cndmask_b32 v{Q+1}, v{V+2}, v{K+2}, {m1}',
              f'v_max_f32 v{a}, v{Q}, v{Q+1}', f'v_max_f32 v{b}, v{Q}, v{Q+1}',
              f'v_mul_f32 v{Q}, s{sSC}, v{Q}', f'v_mul_f32 v{Q+1}, s{sSC}, v{Q+1}',
              f'v_permlane32_swap_b32 v{a}, v{b}',
              f'v_max_f32 v{K}, v{a}, v{b}', f'v_max_f32 v{K+1}, v{a}, v{b}', 1,
              f'v_permlane16_swap_b32 v{K}, v{K+1}',
              f'v_max_f32 v{a}, v{K}, v{K+1}',
              f'v_fma_f32 v{Q}, -v{a}, s{sSC}, v{Q}', f'v_fma_f32 v{Q+1}, -v{a}, s{sSC}, v{Q+1}',
              f'v_exp_f32 v{Q}, v{Q}', f'v_exp_f32 v{Q+1}, v{Q+1}',
              f'v_cvt_pk_bf16_f32 v{a}, v{Q}, v{Q+1}',
              f'v_perm_b32 v{V+cur}, v{a}, v{a}, v{vSEL}', f'v_perm_b32 v{V+cur+1}, v{a}, v{a}, v{vSEL+1}',
              f'v_perm_b32 v{V+prv}, v{a}, v{a}, v{vSEL+2}', f'v_perm_b32 v{V+prv+1}, v{a}, v{a}, v{vSEL+3}', 1,
              f'v_mfma_f32_16x16x32_bf16 {v(Q,4)}, {v(vONE,4)}, {v(V,4)}, 0',
              f'v_mfma_f32_16x16x32_bf16 {v(K,4)}, {v(vVB,4)}, {v(V,4)}, 0', 4,
              f'v_rcp_f32 v{Q}, v{Q}']
        E += [f'v_mul_f32 v{K+i}, v{K+i}, v{Q}' for i in range(4)]
        o = vOUT + 2*((t-1) & 1)
        E += [f'v_cvt_pk_bf16_f32 v{o}, v{K}, v{K+1}', f'v_cvt_pk_bf16_f32 v{o+1}, v{K+2}, v{K+3}']
        if t in (2, 4):
            E += [1, f'v_permlane16_swap_b32 v{vOUT}, v{vOUT+2}', f'v_permlane16_swap_b32 v{vOUT+1}, v{vOUT+3}',
                  lambda: T.store([f'buffer_store_dwordx4 {v(vOUT,4)}, v{vST}, {srd(SWS)}, s{sCB} offen offset:{(t//2-1)*512}'], always_sc1=cfg.pt is None)]
        return E
    class Feed:
        def __init__(self, E): self.E = list(E); self.gap = 0
        def step(self, n):
            if self.gap > 0:
                self.gap -= 1; return
            while n > 0 and self.E:
                e = self.E[0]
                if isinstance(e, int):
                    self.E.pop(0); self.gap = e - 1; return
                w = 1 if callable(e) else 2 if e.startswith(('v_exp', 'v_rcp', 'v_permlane', 'v_mfma')) else 1
                self.E.pop(0)
                e() if callable(e) else p(e)
                n -= w
        def flush(self):
            for e in self.E:
                if isinstance(e, int): continue
                e() if callable(e) else p(e)
            self.E = []
    for i in range(NF): rd(i)
    if not cfg.woa: q_tread(14, 2)
    for i in range(4): p(f'v_mov_b32 v{vONE+i}, 0x3f803f80')
    p1bars = cfg.p1bars if cfg.woa else ((0, 9),) + cfg.p1bars
    for t in range(5):
        Q, K, V = ACC[t & 1], ACC[t & 1] + 4, ACC[t & 1] + 8
        F = Feed(([4] + attn(t - 1)) if t > 0 else [])
        for j in range(16):
            i = 16*t + j
            if (t, j) == cfg.p1bars[0] and cfg.woa: p('s_waitcnt vmcnt(0)')
            if (t, j) in p1bars: T.bar()
            p.wait_lg(tk[i])
            f = v(vFR + 4*(i % NF), 4); w = WR + 12*j
            cc = lambda a: '0' if j == 0 else v(a, 4)
            p(f'v_mfma_f32_16x16x32_bf16 {v(K,4)}, {v(w+4,4)}, {f}, {cc(K)}'); F.step(2)
            if t > 0:
                p(f'v_mfma_f32_16x16x32_bf16 {v(Q,4)}, {v(w,4)}, {f}, {cc(Q)}'); F.step(2)
            p(f'v_mfma_f32_16x16x32_bf16 {v(V,4)}, {f}, {v(w+8,4)}, {cc(V)}')
            if F.gap > 0: F.step(0)
            if i + NF < 80: rd(i + NF)
        F.flush()
    Feed(attn(4)).flush()
    T.ts('p1_done')
    vLIN = 1
    W1R = 192
    vTR1, vTR3, vA3 = 44, 45, 6
    vG1, vS1, vC1, vC3 = 20, 24, 28, 32
    n_a, n_b, n_c = cfg.w3split
    p(f'v_lshlrev_b32 v{vLIN}, 4, v0')
    def w1_tread(j0, j1, wait):
        for j in range(j0, j1):
            for h in range(2):
                p(f'ds_read_b64_tr_b16 {v(W1R + 4*j + 2*h, 2)}, v{vTR1} offset:{j*4096 + h*512}')
        if wait: p('s_waitcnt lgkmcnt(0)')
    publish_and_poll(T, 1, 10, mid=lambda: (a3_load(p, vA3, vLIN), w1_tread(0, 7, False)), mid2=lambda: w1_tread(7, 16, True))
    adma_run(T, adma_k_issue(T, [vLIN]*4), 4, ahead=cfg.ah[0], after={cfg.wpos: lambda: w3_go(p, vA3, 0, 0, cfg.wpre, cfg.wthr), 3: lambda: w3_go(p, vA3, 0, cfg.wpre, n_a, cfg.wthr)})
    T.ts('a2_done')
    T.prio(cfg.px)
    def w3_tr(first, c0, c1):
        return [f'ds_read_b64_tr_b16 {v(WR + 12*(first + c) + 4*s + 2*h, 2)}, v{vTR3} offset:{c*12288 + s*128 + h*1536}'
                for c in range(c0, c1) for s in range(3) for h in range(2)]
    def w3_tread(first, c0, c1, wait=True):
        for x in w3_tr(first, c0, c1): p(x)
        if wait: p('s_waitcnt lgkmcnt(0)')
    def c3_mf(first, n):
        return [f'v_mfma_f32_16x16x32_bf16 {v(vC3+4*s,4)}, {v(WR+12*jj+4*s,4)}, {v(vONE,4)}, {"0" if jj == 0 else v(vC3+4*s,4)}'
                for jj in range(first, first + n) for s in range(3)]
    vM0, vM1, vHS, vAD, vPA, vPF = 46, 47, 48, 2, 49, 54
    sPM, sHM, sHD, sHF = sM, sM + 2, sM + 6, sM + 7
    p(f'''
    v_and_b32 v12, 15, v0
    v_lshrrev_b32 v11, 4, v0
    v_min_u32 v10, 2, v12
    v_lshlrev_b32 v10, 10, v10
    v_lshl_add_u32 v10, v11, 4, v10
    v_add_u32 v10, {VEC3}, v10
    ''')
    for j in range(16): p(f'ds_read_b128 {v(128+4*j,4)}, v10 offset:{j*64}')
    p(f'''
    v_lshlrev_b32 v13, 4, v12
    v_lshl_add_u32 v{vAD}, v11, 10, v13
    v_add_u32 v3, {ROWA}, v13
    s_lshr_b32 s{sT}, s{sJ}, 2
    s_add_u32 s{sT}, s{sT}, 1
    s_sub_u32 s{sT+1}, 0, s{sT}
    s_and_b32 s{sT+2}, s{sJ}, 2
    s_cmp_eq_u32 s{sT+2}, 0
    s_cselect_b32 s{sT}, s{sT}, s{sT+1}
    s_mov_b32 s{sHALO}, {CS + W_HALO:#x}
    s_cselect_b32 s{sHALO}, s{sHALO}, {(W_HALO - CS) & 0xffffffff:#x}
    s_cselect_b32 s{sT+2}, 7, 0
    s_add_u32 s{sHALO}, s{sHALO}, s{sCB}
    v_lshrrev_b32 v14, 5, v0
    v_lshlrev_b32 v15, 6, v14
    v_add_u32 v14, s{sOCT}, v14
    v_lshlrev_b32 v14, 10, v14
    v_and_b32 v11, 1, v11
    v_add_u32 v12, s{sT}, v12
    v_lshl_add_u32 v13, v11, 4, v12
    v_add_u32 v13, 16, v13
    v_lshl_add_u32 v{vM1}, v13, 4, v14
    v_mul_u32_u24 v13, 48, v11
    v_add_u32 v13, v13, v12
    v_cmp_gt_u32 vcc, 64, v13
    v_lshl_add_u32 v13, v13, 4, v14
    v_mov_b32 v12, {OOB:#x}
    v_cndmask_b32_e64 v{vM0}, v12, v13, vcc
    v_bfe_u32 v13, v0, 2, 3
    v_cmp_eq_u32 vcc, s{sT+2}, v13
    v_and_b32 v13, 3, v0
    v_lshl_add_u32 v15, v13, 4, v15
    s_lshl_b32 s{sT+1}, s{sOCT}, 6
    v_add_u32 v15, s{sT+1}, v15
    v_cndmask_b32_e64 v{vHS}, v12, v15, vcc
    s_lshr_b32 s{sT}, s{sW}, 1
    s_add_u32 s{sT}, s{sT}, 1
    s_sub_u32 s{sT+1}, s{sT}, 4
    s_sub_u32 s{sT+2}, 64, s{sT}
    s_bitcmp0_b32 s{sW}, 0
    s_cselect_b32 s{sT+1}, s{sT+1}, s{sT+2}
    s_cselect_b32 s{sT+2}, 0, 31
    v_add_u32 v13, s{sT+1}, v13
    v_cmp_gt_u32 s[{sPM}:{sPM+1}], 64, v13
    s_lshl_b32 s{sT}, s{sW}, 2
    s_sub_u32 s{sT}, s{sT}, s{sROT2}
    s_and_b32 s{sT}, s{sT}, 15
    s_lshl_b32 s{sT}, s{sT}, 12
    v_lshrrev_b32 v12, 2, v0
    v_lshlrev_b32 v12, 10, v12
    v_lshl_add_u32 v12, v13, 4, v12
    v_add_u32 v{vPA}, s{sT}, v12
    v_and_b32 v12, 1, v0
    v_lshlrev_b32 v{vPF}, 7, v12
    s_lshl_b32 s{sT}, s{sW}, 10
    s_add_u32 s{sT}, s{sT}, s{sCB}
    s_add_u32 s{sHD}, s{sT}, {W_HALO:#x}
    s_lshl_b32 s{sT}, s{sW}, 8
    s_add_u32 s{sT}, s{sT}, s{sCB}
    s_add_u32 s{sHF}, s{sT}, {W_HALO + 0x1000:#x}
    s_cmp_eq_u32 s{sR}, s{sT+2}
    s_cselect_b32 s{sHD}, {OOB:#x}, s{sHD}
    s_cmp_eq_u32 s{sROT2}, 0
    s_cselect_b32 s{sHM}, -2, -4
    s_cselect_b32 s{sHM+2}, -4, -2
    s_brev_b32 s{sHM+1}, s{sHM}
    s_brev_b32 s{sHM+3}, s{sHM+2}
    s_mov_b32 s{sT+4}, {fbits(K2)}
    s_mov_b32 s{sT+5}, {fbits(K1)}
    ''')
    adma_k_prep(p, W_HB, sROT2)
    p('s_waitcnt vmcnt(0) lgkmcnt(0)')
    T.ts('w2_done')
    T.bar()
    T.prio(cfg.pc)
    assert n_a <= 5
    hm = []
    for j in range(16):
        hm.append(f'v_mfma_f32_16x16x32_bf16 {v(12,4)}, {v(128+4*j,4)}, {v(128+4*j,4)}, {"0" if j == 0 else v(12,4)}')
        hm.append(f'v_mfma_f32_16x16x32_bf16 {v(16,4)}, {v(W1R+4*j,4)}, {v(128+4*j,4)}, {"0" if j == 0 else v(16,4)}')
    interleave(p, w3_tr(0, 0, n_a), hm[:24])
    p('s_waitcnt lgkmcnt(0)')
    T.bar()
    for x in hm[24:] + c3_mf(0, n_a): p(x)
    p(f'v_lshlrev_b32 v10, 3, v0\nv_add_u32 v10, {GRAM}, v10\nds_write_b64 v10, v[12:13]')
    for i in range(4):
        p(f'v_mov_b32_dpp v{vG1+i}, v{16+i} row_newbcast:0 row_mask:0xf bank_mask:0xf')
        p(f'v_mov_b32_dpp v{vS1+i}, v{16+i} row_newbcast:1 row_mask:0xf bank_mask:0xf')
        p(f'v_mov_b32_dpp v{vC1+i}, v{16+i} row_newbcast:2 row_mask:0xf bank_mask:0xf')
    vACC, vRW = 176, 128
    gemm_kmajor(T, 16, W1R, vACC, [144 + 4*i for i in range(8)], [vAD])
    T.ts('p3_mm')
    T.prio(cfg.pe)
    T.bar()
    for t in range(4): p(f'ds_read_b128 {v(vRW+4*t,4)}, v3 offset:{t*256}')
    p('s_waitcnt lgkmcnt(0)')
    for n, t in enumerate((0, 3, 1, 2)):
        a = vACC + 4*t; c = vRW + 4*t
        for h in (0, 2): p(f'v_pk_mul_f32 {v(a+h,2)}, {v(a+h,2)}, {v(c,2)} op_sel_hi:[1,0]')
        for h in (0, 2): p(f'v_pk_fma_f32 {v(a+h,2)}, {v(vG1+h,2)}, {v(c,2)}, {v(a+h,2)} op_sel:[0,1,0] op_sel_hi:[1,1,1]')
        for h in (0, 2): p(f'v_pk_fma_f32 {v(a+h,2)}, {v(vS1+h,2)}, {v(c+2,2)}, {v(a+h,2)} op_sel_hi:[1,0,1]')
        for h in (0, 2): p(f'v_pk_fma_f32 {v(a+h,2)}, {v(vC1+h,2)}, {v(c+2,2)}, {v(a+h,2)} op_sel:[0,1,0] op_sel_hi:[1,1,1]')
        gelu_pairs(p, a, 56, 12 + 2*n)
        if n & 1:
            ob = 12 + 4*(n >> 1)
            p(f'v_permlane16_swap_b32 v{ob}, v{ob+2}\nv_permlane16_swap_b32 v{ob+1}, v{ob+3}')
            if n == 1: p(f'buffer_store_dwordx4 {v(ob,4)}, v{vHS}, {srd(SWS)}, s{sHALO} offen sc1')
            T.store([f'buffer_store_dwordx4 {v(ob,4)}, v{vM0 if n == 1 else vM1}, {srd(SWS)}, s{sCB} offen'])
    T.ts('p3_done')
    def halo_flag():
        p(f'v_and_b32 v24, 31, v0\nv_lshlrev_b32 v24, 2, v24\ns_lshl_b32 s{sT}, s{sJ}, 7\ns_add_u32 s{sT}, s{sT}, s{sHALO}\ns_add_u32 s{sT}, s{sT}, 0x1000\nbuffer_store_dword v21, v24, {srd(SWS)}, s{sT} offen sc1')
    publish_and_poll(T, 3, 20, extra_w1=halo_flag, mid=lambda: w3_tread(n_a, 0, 2, False), mid2=lambda: w3_tread(n_a, 2, n_b))
    hf = [f'buffer_load_dword v24, v{vPF}, {srd(SWS)}, s{sHF} offen sc1']
    th = {}
    def halo1():
        p(hf[0]); th[0] = p.vm
    def halo2():
        L = p.label('hl')
        p.wait_vm(th[0])
        p(f's_cmp_eq_u32 s{sHD}, {OOB:#x}\ns_cbranch_scc1 {L}')
        T.poll(hf, [f'v_cmp_ne_u32 vcc, s{sFV}, v24'], first_issued=True, sleep=2)
        p(f'{L}:\nbuffer_load_dwordx4 v[24:27], v{vLIN}, {srd(SWS)}, s{sHD} offen sc1'); th[1] = p.vm
    def halo3():
        w3_go(p, vA3, n_a + n_b, 0, cfg.wpre, cfg.wthr)
        p.wait_vm(th[1])
        p(f's_mov_b64 exec, s[{sPM}:{sPM+1}]\nds_write_b128 v{vPA}, v[24:27]\ns_mov_b64 exec, -1\ns_waitcnt lgkmcnt(0)')
        T.bar()
        w3_go(p, vA3, n_a + n_b, cfg.wpre, n_c, cfg.wthr)
    adma_run(T, adma_k_issue(T, [vLIN]*4, masks=sHM), 4, ahead=cfg.ah[2], after={cfg.hpos[0]: halo1, cfg.hpos[1]: halo2, 3: halo3} if cfg.hpos[1] < 3 else {cfg.hpos[0]: halo1, 3: lambda: (halo2(), halo3())})
    T.ts('a4_done')
    T.prio(cfg.px)
    vU, vU2 = 4, 2
    p(f's_min_u32 s{sT+6}, s{sJ}, 3\ns_mul_i32 s{sT+7}, s{sJ}, 5\ns_add_u32 s{sT+6}, s{sT+6}, s{sT+7}\ns_lshl_b32 s{sT+6}, s{sT+6}, 2\ns_lshl_b32 s{sT+7}, s{sW}, 1\ns_add_u32 s{sT+6}, s{sT+6}, s{sT+7}')
    pub_addr(p, vU, 10, sT + 6)
    p(f'''
    s_cmp_lt_u32 s{sJ}, 3
    s_cselect_b32 s{sT+6}, 4, 2
    s_cmp_lt_u32 s{sW}, s{sT+6}
    s_cselect_b32 s{sT+6}, 0, {OOB:#x}
    v_add_u32 v3, {ROW3 - ROWA}, v3
    s_add_u32 s{sL+1}, s{sCB}, {W_U + 8192:#x}
    s_add_u32 s{sL+2}, s{sCB}, {W_U + 16384:#x}
    s_or_b32 s{sL+2}, s{sL+2}, s{sT+6}
    v_lshrrev_b32 v2, 4, v0
    v_lshlrev_b32 v2, 4, v2
    s_mul_i32 s{sT+6}, s{sW}, 192
    s_add_u32 s{sT+6}, s{sT+6}, {C3L}
    v_add_u32 v2, s{sT+6}, v2
    s_add_u32 s{sL+3}, s{sROT4}, s{sW}
    ''')
    for c in range(11):
        p(f's_cmp_ge_u32 s{sL+3}, 43\ns_cselect_b32 s{sT+2}, 43, 0\ns_sub_u32 s{sL+3}, s{sL+3}, s{sT+2}\ns_lshl_b32 s{sT+2}, s{sL+3}, 12\ns_add_u32 s{sT+4+c}, s{sT+2}, s{sCB}\ns_add_u32 s{sL+3}, s{sL+3}, 4')
    p(f's_cmp_eq_u32 s{sW}, 3\ns_cselect_b32 s{sT+14}, {OOB:#x}, s{sT+14}\ns_waitcnt vmcnt(0)')
    T.ts('w4_done')
    T.bar()
    T.prio(cfg.pc)
    interleave(p, w3_tr(n_a + n_b, 0, n_c), c3_mf(n_a, n_b))
    p('s_waitcnt lgkmcnt(0)')
    T.bar()
    for x in c3_mf(n_a + n_b, n_c): p(x)
    if cfg.ts:
        p(f'v_mov_b32 v5, v{T.vTS}'); T.vTS = 5
    vA5, vT5, vRC, F5 = 44, vC3, 56, (6, 10, 60)
    PA = lambda s: 14 + 6*s
    for s in range(3): p(f'ds_write_b128 v2, {v(vT5+4*s,4)} offset:{s*64}')
    tk = {}
    def rd5(i):
        t, j = divmod(i, 16)
        p(f'ds_read_b128 {v(F5[i%3],4)}, v{vLIN} offset:{t*16384 + j*1024}'); tk[i] = p.lg
    def pk_stage():
        H = [(vT5 + 4*s + h, vA5 + 4*s + h, PA(s) + 2 + h) for s in range(3) for h in (0, 2)]
        for tt, a, x in H: p(f'v_pk_fma_f32 {v(tt,2)}, {v(tt,2)}, {v(vRC,2)}, {v(a,2)} op_sel_hi:[1,0,1]')
        for tt, a, x in H: p(f'v_pk_mul_f32 {v(x,2)}, {v(tt,2)}, {v(tt,2)}')
        for tt, a, x in H: p(f'v_pk_fma_f32 {v(x,2)}, {v(x,2)}, {v(vRC+2,2)}, {v(vRC,2)} op_sel:[0,0,1] op_sel_hi:[1,0,1]')
        for tt, a, x in H: p(f'v_pk_mul_f32 {v(x,2)}, {v(x,2)}, {v(tt,2)}')
    def gel(t, pk):
        E = []
        for s in range(3): E += [f'v_exp_f32 v{PA(s)+2+i}, v{PA(s)+2+i}' for i in range(4)] + ([] if pk else [f'v_fma_f32 v{PA(s)+2+i}, v{PA(s)+2+i}, v{vRC+3}, v{vRC+3}' for i in range(4)])
        if pk: E += [f'v_pk_fma_f32 {v(PA(s)+2+h,2)}, {v(PA(s)+2+h,2)}, {v(vRC+2,2)}, {v(vRC+2,2)} op_sel:[0,1,1] op_sel_hi:[1,1,1]' for s in range(3) for h in (0, 2)]
        if t < 3: E += [f'ds_read_b128 {v(vRC,4)}, v3 offset:{(t+1)*256}']
        for s in range(3):
            x = PA(s) + 2
            E += [f'v_rcp_f32 v{x+i}, v{x+i}' for i in range(4)]
            if pk: E += [f'v_pk_mul_f32 {v(x+h,2)}, {v(x+h,2)}, {v(vT5+4*s+h,2)}' for h in (0, 2)]
            else: E += [f'v_mul_f32 v{x+i}, v{x+i}, v{vT5+4*s+i}' for i in range(4)]
            if t < 3: E += [f'ds_read_b128 {v(vT5+4*s,4)}, v2 offset:{s*64}']
            o = PA(s) + 2*(t & 1)
            E += [f'v_cvt_pk_bf16_f32 v{o}, v{x}, v{x+1}', f'v_cvt_pk_bf16_f32 v{o+1}, v{x+2}, v{x+3}']
        if t & 1:
            for s in range(3): E += [f'v_permlane16_swap_b32 v{PA(s)}, v{PA(s)+2}', f'v_permlane16_swap_b32 v{PA(s)+1}, v{PA(s)+3}']
            E += [lambda: T.store([f'buffer_store_dwordx4 {v(PA(s),4)}, v{vU}, {srd(SWS)}, s{sCB if s == 0 else sL+s} offen offset:{(t>>1)*512}' for s in range(3)])]
        return E
    T.bar()
    T.prio(cfg.p5c)
    for i in range(3): rd5(i)
    for t in range(4):
        F = Feed(gel(t - 1, False) if t > 0 else [])
        for j in range(16):
            i = 16*t + j
            if (t, j) in ((2, cfg.p5x), (3, cfg.p5y)): T.bar()
            p.wait_lg(tk[i])
            for s in range(3):
                p(f'v_mfma_f32_16x16x32_bf16 {v(vA5+4*s,4)}, {v(WR+12*j+4*s,4)}, {v(F5[i%3],4)}, {"0" if j == 0 else v(vA5+4*s,4)}')
                F.step(cfg.e5[s])
            if j + 3 < 16: rd5(i + 3)
        F.flush()
        T.bar()
        if t == 0: p(f'ds_read_b128 {v(vRC,4)}, v3')
        tkr = p.lg
        if t < 3:
            for i in range(3): rd5(16*t + 16 + i)
        p.wait_lg(tkr)
        pk_stage()
    Feed(gel(3, True)).flush()
    T.ts('p5_done')
    publish_and_poll(T, 6, 6)
    def u_issue(c):
        p(f's_add_u32 m0, s{sW4K}, {(c % 9)*16384}')
        for i in range(4):
            p(f'buffer_load_dwordx4 v{vLIN}, {srd(SWS)}, s{sT+4+c} offen offset:{i*1024} sc1 lds')
    adma_run(T, u_issue, 11, ahead=cfg.u_ahead, bars=cfg.ubars)
    T.ts('a6_done')
    return T

def team_b(cfg):
    T = Team(cfg, 'B', vTS=15, vFA=13, vFB=14, vFT=8)
    p = T.p
    NB = 96
    vLIN = 1
    vWA, vTR, vTR2 = 40, 3, 4
    T.prio(cfg.pb0)
    p(f'''
    v_lshlrev_b32 v{vLIN}, 4, v0
    s_lshl_b32 s{sT}, s{sR}, 6
    s_lshl_b32 s{sT+1}, s{sW}, 2
    s_add_u32 s{sT}, s{sT}, s{sT+1}
    s_sub_u32 s{sT}, s{sT}, 16
    s_lshl_b32 s{sT}, s{sT}, 10
    v_add_u32 v2, s{sT}, v{vLIN}
    v_mov_b32 v{T.vFB}, {WF + 16}
    s_lshl_b32 s{sT}, s{sW}, 2
    v_add_u32 v{T.vFA}, s{sT}, v{T.vFB}
    v_and_b32 v5, 7, v0
    v_lshlrev_b32 v5, 4, v5
    s_lshl_b32 s{sT}, s{sW}, 9
    s_add_u32 s{sT}, s{sT}, {XS}
    v_add_u32 v5, s{sT}, v5
    s_lshl_b32 s{sT}, s{sJ}, 3
    s_mov_b64 s[{sM}:{sM+1}], 0xff
    s_lshl_b64 s[{sM}:{sM+1}], s[{sM}:{sM+1}], s{sT}
    v_mov_b32 v6, 0x3f803f80
    s_mov_b32 s{sT+4}, {fbits(1/512)}
    s_mov_b32 s{sT+5}, {fbits(1e-5)}
    ''')
    kernarg_wait(T)
    mk_srd(p, SA, P_X, 2048 * 1024)
    T.bar()
    if cfg.pf0:
        L = p.label('pf')
        p(f'''
        s_cmp_lg_u32 s{sW}, 0
        s_cbranch_scc1 {L}a
        s_lshl_b32 s{sT+6}, s{sR}, 3
        s_add_u32 s{sT+6}, s{sT+6}, s{sJ}
        s_lshl_b32 s{sT+6}, s{sT+6}, 13
        v_lshlrev_b32 v7, 7, v0
        buffer_load_dword v94, v7, {srd(SA)}, s{sT+6} offen {cfg.xnt}
        {L}a:
        s_cmp_lg_u32 s{sW}, 1
        s_cbranch_scc1 {L}b
        ''')
        pf_share(p, SB, P_QKV, 512*3072, 7, 94)
        p(f'{L}b:')
    tokx = {}
    def x_issue(a, b):
        for q in range(a, b):
            t, i = divmod(q, 4)
            p(f'buffer_load_dwordx4 {v(NB + q*8 + 4,4)}, v2, {srd(SA)}, 0 offen offset:{i*1024} {cfg.xnt}')
            if i == 3:
                tokx[t] = p.vm
                if t < 4: p('v_add_u32 v2, 0x4000, v2')
    x_issue(0, cfg.xb[0])
    p('.SPLIT')
    mk_srd(p, SWS, P_WS, WS_BYTES)
    ws_src_addr(p, vWA, 7)
    tr_addr1(p, vTR, 7, WST)
    p(f'''
    s_lshl_b32 s{sT}, s{sROT}, 2
    v_subrev_u32 v12, s{sT}, v0
    v_and_b32 v12, 63, v12
    s_and_b32 s{sT}, s{sW}, 1
    s_lshl_b32 s{sT}, s{sT}, 2
    v_xor_b32 v7, s{sT}, v12
    v_and_b32 v7, 7, v7
    v_lshlrev_b32 v7, 4, v7
    v_lshl_add_u32 v44, v12, 8, v7
    s_lshr_b32 s{sT}, s{sW}, 1
    s_lshl_b32 s{sT}, s{sT}, 7
    v_add_u32 v44, s{sT}, v44
    v_xor_b32 v45, 16, v44
    v_xor_b32 v46, 32, v44
    v_xor_b32 v47, 48, v44
    v_lshlrev_b32 v12, 4, v12
    v_add_u32 v12, {VEC3}, v12
    ''')
    p(TAGCALC)
    T.ts('issued')
    for t in range(5):
        p.wait_vm(tokx[t])
        if t == 0:
            x_issue(cfg.xb[0], 20); T.prio(cfg.pc); T.ts('x0')
        if t == 4: T.ts('x4')
        S, Q = 16, 20
        for k in range(4):
            for i in range(4):
                x = NB + (4*t + i)*8 + 4 + k
                p(f'v_dot2_f32_bf16 v{S+i}, v{x}, v6, {"0" if k == 0 else f"v{S+i}"}')
                p(f'v_dot2_f32_bf16 v{Q+i}, v{x}, v{x}, {"0" if k == 0 else f"v{Q+i}"}')
        if t > 0:
            p(f's_mov_b64 exec, s[{sM}:{sM+1}]')
            for i in range(4):
                p(f'ds_write_b128 v5, {v(NB + (4*t+i)*8 + 4, 4)} offset:{(t-1)*2048 + i*128}')
            p('s_mov_b64 exec, -1')
        xreduce4_multi(p, [(S, S+1, S+2, S+3), (Q, Q+1, Q+2, Q+3)])
        chain = []
        for sh in (8, 4, 2, 1):
            chain.append([f'v_add_f32_dpp v{r}, v{r}, v{r} row_ror:{sh} row_mask:0xf bank_mask:0xf' for r in (S, Q)])
        chain += [[f'v_mul_f32 v{S}, s{sT+4}, v{S}'], [f'v_mul_f32 v{S+1}, v{S}, v{S}'], [f'v_fma_f32 v{Q}, v{Q}, s{sT+4}, -v{S+1}'],
                  [f'v_max_f32 v{Q}, 0, v{Q}'], [f'v_add_f32 v{Q}, s{sT+5}, v{Q}'], [f'v_rsq_f32 v{Q}, v{Q}'], [f'v_mul_f32_e64 v{S}, -v{S}, v{Q}']]
        for i in range(4): chain.append([f'v_readlane_b32 s{sL+2*i}, v{Q}, {16*i}', f'v_readlane_b32 s{sL+2*i+1}, v{S}, {16*i}'])
        fill = []
        for i in range(4):
            n = NB + (4*t + i)*8
            for k in range(4): fill.append([f'v_lshlrev_b32 v{n+2*k}, 16, v{n+4+k}', f'v_and_b32 v{n+2*k+1}, 0xffff0000, v{n+4+k}'])
        for a, b in zip(fill, chain + [[]]):
            for x in a + b: p(x)
        for i in range(4):
            n = NB + (4*t + i)*8
            for h in range(0, 8, 2):
                p(f'v_pk_fma_f32 {v(n+h,2)}, {v(n+h,2)}, s[{sL+2*i}:{sL+2*i+1}], s[{sL+2*i}:{sL+2*i+1}] op_sel:[0,0,1] op_sel_hi:[1,0,1]')
    T.ts('ln_done')
    vZ, vH, vGB, vGA, vG, vSB = 48, 64, 80, 84, 88, 92
    vAD, vST, vSTX, vSA = 5, 6, 7, 2
    vACC = 32
    X = 96
    p(f'v_and_b32 v16, 15, v0\nv_lshrrev_b32 v17, 4, v0\nv_lshlrev_b32 v18, 4, v16\nv_lshl_add_u32 v{vAD}, v17, 10, v18')
    pub_addr(p, vST, 19, sOCT)
    pub_addr(p, vSTX, 19, sOCT, tilemajor=True)
    p(f'''
    s_lshl_b32 s{sT+1}, s{sW}, 8
    v_lshrrev_b32 v18, 2, v0
    v_lshlrev_b32 v18, 4, v18
    v_add_u32 v{vSA}, s{sT+1}, v18
    v_mov_b32 v72, {WF}
    s_lshr_b32 s{sT+1}, s{sW}, 1
    s_lshl_b32 s{sT+1}, s{sT+1}, 10
    s_and_b32 s{sT+2}, s{sW}, 1
    s_lshl_b32 s{sT+2}, s{sT+2}, 3
    s_add_u32 s{sT+1}, s{sT+1}, s{sT+2}
    s_add_u32 s{sT+1}, s{sT+1}, {MODL}
    v_add_u32 v73, s{sT+1}, v{vLIN}
    s_lshl_b32 s{sT+1}, s{sW}, 10
    v_add_u32 v74, s{sT+1}, v{vLIN}
    v_add_u32 v75, {MODL}, v{vLIN}
    v_lshlrev_b32 v76, 7, v16
    v_lshl_add_u32 v76, v17, 3, v76
    s_lshl_b32 s{sT+1}, s{sW}, 5
    s_add_u32 s{sT+1}, s{sT+1}, {XS}
    v_add_u32 v76, s{sT+1}, v76
    s_lshl_b32 s{sT+1}, s{sOCT}, 4
    s_add_u32 s{sT+1}, s{sT+1}, {MODL}
    v_lshlrev_b32 v77, 3, v17
    v_add_u32 v77, s{sT+1}, v77
    ''')
    adma_k_prep(p, W_Y)
    w3_setup(p, 16, 84)
    p(f's_and_b32 s{sT}, s{sW}, 1\ns_lshl_b32 s{sT}, s{sT}, 10\ns_add_u32 s{sT}, s{sT}, {A3L}\nv_add_u32 v87, s{sT}, v{vLIN}\nds_write_b128 v87, v[84:87]')
    mk_srd(p, SW, P_WO, 512 * 1024)
    for c in range(4):
        p(f's_add_u32 s{sT}, s{sROT}, s{sW}\ns_add_u32 s{sT}, s{sT}, {4*c}\ns_and_b32 s{sT}, s{sT}, 15\ns_lshl_b32 s{sM+4+c}, s{sT}, 15')
        p(f's_add_u32 s{sT}, s{sROT2}, s{sW}\ns_add_u32 s{sT}, s{sT}, {4*c}\ns_and_b32 s{sT}, s{sT}, 15\ns_lshl_b32 s{sC5+c}, s{sT}, 15')
    p(f'v_subrev_u32 v{vTR2}, {WST}, v{vTR}')
    T.wait_flags(72, cfg.modf_at, sleep=2)
    T.prio(cfg.pl)
    T.ts('gath')
    T.poll([f'buffer_load_dwordx4 {v(48+4*i,4)}, v{vLIN}, {srd(SWS)}, 0 offen offset:{i*1024} sc1' for i in range(4)],
           [f'v_xor_b32 v{32+i}, s{sTAG}, v{49+2*i}' for i in range(8)] +
           ['v_or3_b32 v32, v32, v33, v34', 'v_or3_b32 v35, v35, v36, v37', 'v_or3_b32 v32, v32, v38, v39', 'v_or_b32 v32, v32, v35', 'v_cmp_ne_u32 vcc, 0, v32'], sleep=8)
    T.ts('gath2')
    T.prio(cfg.pmod)
    WOR, W2R, W4R = 128, 192, 84
    tok = {}
    def w_issue(ldsbase, nk):
        p(f's_add_u32 m0, s{sW4K}, {ldsbase}')
        for i in range(4):
            p(f'buffer_load_dwordx4 v{vWA+i}, {srd(SW)}, s{sKOFF} offen offset:{i*1024} lds')
        if nk == 16: p(f's_add_u32 s{sKOFF}, s{sKOFF}, 0x20000\ns_and_b32 s{sKOFF}, s{sKOFF}, 0x7ffff')
        else: p(f's_add_u32 s{sKOFF}, s{sKOFF}, 0x20000\ns_cmp_ge_u32 s{sKOFF}, {nk*32768}\ns_cselect_b32 s{sT}, {nk*32768}, 0\ns_sub_u32 s{sKOFF}, s{sKOFF}, s{sT}')
    def issue1(c):
        ptr = (P_WO, P_W2, P_W1)[c // 4]
        p(f's_mov_b64 s[{SW}:{SW+1}], s[{ptr}:{ptr+1}]\ns_add_u32 m0, s{sW4K}, {(ABUF if c // 4 == 1 else WST) + (c % 4)*16384}')
        for i in range(4):
            p(f'buffer_load_dwordx4 v{vWA+i}, {srd(SW)}, s{(sC5 if c // 4 == 1 else sM+4) + c%4} offen offset:{i*1024} lds')
        tok[c] = p.vm
    def tread(dst, ldsoff, vt, nks=4):
        for k in range(nks):
            o = ldsoff + k*4096
            for h in range(2):
                p(f'ds_read_b64_tr_b16 {v(dst + 4*k + 2*h, 2)}, v{vt[o >> 16]} offset:{(o & 0xffff) + h*512}')
    for k in range(4): p(f'v_lshlrev_b32 v{24+2*k}, 16, v{56+2*k}\nv_and_b32 v{25+2*k}, 0xffff0000, v{56+2*k}')
    for k in range(4): p(f'v_lshlrev_b32 v{16+2*k}, 16, v{48+2*k}\nv_and_b32 v{17+2*k}, 0xffff0000, v{48+2*k}')
    for h in range(0, 8, 2): p(f'v_pk_add_f32 {v(24+h,2)}, {v(24+h,2)}, 1.0 op_sel_hi:[1,0]')
    for k in range(4): p(f'v_cvt_pk_bf16_f32 v{36+k}, v{24+2*k}, v{25+2*k}')
    unpack8(p, 24, 36)
    def modrow(t, i):
        n = NB + (4*t + i)*8
        for h in range(0, 8, 2): p(f'v_pk_fma_f32 {v(n+h,2)}, {v(n+h,2)}, {v(24+h,2)}, {v(16+h,2)}')
        for k in range(4): p(f'v_cvt_pk_bf16_f32 v{n+k}, v{n+2*k}, v{n+2*k+1}')
    def wrrow(t, i):
        p(f'ds_write_b128 v{44+i}, {v(NB + (4*t + i)*8,4)} offset:{(t % 4)*16384}')
    def peek(n, tokf):
        L = p.label('pk')
        p.wait_lg(tokf)
        p(f'v_min3_u32 v48, v48, v49, v50\nv_min_u32 v48, v48, v51\nv_cmp_gt_u32 vcc, {n}, v48\ns_cbranch_vccz {L}')
        lg0 = p.lg
        T.wait_flags(72, n)
        p.lg = lg0
        p(f'{L}:')
    for t in range(5):
        for i in range(4):
            if (t, i) in ((1, 2), (3, 2)): p('ds_read_b128 v[48:51], v72'); tf = p.lg
            modrow(t, i)
            if (t, i) == (2, 0): peek(6, tf)
            if (t, i) == (4, 0):
                for k in range(4): p(f'v_add_u32 v{44+k}, 0x10000, v{44+k}')
                peek(7, tf)
            wrrow(t, i)
    p(f's_mov_b32 s{sT+2}, 4096\ns_mov_b32 s{sT+3}, 8192\nv_mov_b32 v79, {FASTW}\ns_waitcnt lgkmcnt(0)')
    T.prio(cfg.pl)
    T.ts('h0w')
    T.bar()
    T.ts('h0')
    g2 = [f'buffer_load_dwordx4 v[16:19], v74, {srd(SWS)}, s{sT+2} offen sc1', f'buffer_load_dwordx4 v[20:23], v74, {srd(SWS)}, s{sT+3} offen sc1']
    def gather2():
        T.poll(g2, [f'v_xor_b32 v{32+i}, s{sTAG}, v{17+2*i}' for i in range(4)] + ['v_or3_b32 v32, v32, v33, v34', 'v_or_b32 v32, v32, v35', 'v_cmp_ne_u32 vcc, 0, v32'], sleep=8, first_issued=True)
        p('v_add_u32 v73, 2048, v73\nds_write2_b32 v73, v16, v18 offset0:0 offset1:1\nv_add_u32 v73, 2048, v73\nds_write2_b32 v73, v20, v22 offset0:0 offset1:1')
    bg = Prog()
    def extras(p):
        p(f'''
        ds_read_b128 v[20:23], v75 offset:3072
        ds_read_b128 v[28:31], v75 offset:4096
        ds_read_b64 v[32:33], v77 offset:2048
        ds_read_b64 v[34:35], v77 offset:3072
        ds_read_b64 v[36:37], v77 offset:4096
        ds_read_b64 v[38:39], v77 offset:5120
        s_waitcnt lgkmcnt(0)
        ''')
        p(f'v_readfirstlane_b32 s{sFAST}, v79')
        for t in range(4): unpack4(p, vZ + 4*t, vH + 2*t)
        unpack8(p, X, 28)
        for i in range(8): p(f'v_add_f32 v{X+i}, 1.0, v{X+i}')
        for k in range(4): p(f'v_cvt_pk_bf16_f32 v{28+k}, v{X+2*k}, v{X+2*k+1}')
        p(f's_cmp_eq_u32 s{sW}, 1\ns_cselect_b64 s[{sM}:{sM+1}], -1, 0\ns_cmp_ge_u32 s{sW}, 2\ns_cselect_b64 s[{sM+2}:{sM+3}], -1, 0\nv_mov_b32 v24, 0x3f803f80\ns_min_u32 s{sT+1}, s{sW}, 2\ns_lshl_b32 s{sT+1}, s{sT+1}, 10\nv_add_u32 v12, s{sT+1}, v12')
        for k in range(4): p(f'v_cndmask_b32 v{28+k}, v{28+k}, v{20+k}, s[{sM}:{sM+1}]')
        for k in range(4): p(f'v_cndmask_b32 v{28+k}, v{28+k}, v24, s[{sM+2}:{sM+3}]')
        p('ds_write_b128 v12, v[28:31]')
        for dst, src in ((vGA, 32), (vSB, 34), (vG, 36), (vGB, 38)): unpack4(p, dst, src)
        for i in range(4): p(f'v_add_f32 v{vG+i}, 1.0, v{vG+i}')
        p(f'v_cvt_pk_bf16_f32 v36, v{vG}, v{vG+1}\nv_cvt_pk_bf16_f32 v37, v{vG+2}, v{vG+3}')
        unpack4(p, vG, 36)
        p(f's_lshl_b32 s{sT+1}, s{sW}, 2\ns_add_u32 s{sT+1}, s{sT+1}, {SACC}\nv_add_u32 v12, s{sT+1}, v{vLIN}')
    extras(bg)
    items = bg.items
    def rb(name):
        p('s_waitcnt lgkmcnt(0)'); T.ts('r_w' + name); T.bar(); T.ts('r_s' + name)
    def bgrun():
        T.prio(cfg.px)
        for it in items: p(it.text)
        T.prio(cfg.pl)
    if cfg.woa:
        issue1(2); issue1(3)
        rb('0')
        issue1(4)
        tread(WOR, 0, [vTR], nks=8)
        p.wait_vm(tok[3])
        rb('m')
        issue1(8); issue1(9)
        tread(WOR + 32, 32768, [vTR], nks=8)
        rb('1')
        issue1(10); issue1(11); issue1(5)
        rb('2'); issue1(6)
    else:
        issue1(0); issue1(1)
        rb('a'); issue1(2); issue1(3)
        rb('0'); issue1(4)
        p.wait_vm(tok[1])
        rb('1'); issue1(5)
        tread(WOR, 0, [vTR], nks=8)
        p.wait_vm(tok[3])
        rb('m'); issue1(8); issue1(9)
        tread(WOR + 32, 32768, [vTR], nks=8)
        rb('2'); issue1(10); issue1(11); issue1(6)
    for x in g2: p(x)
    tg2 = p.vm
    rb('3'); issue1(7)
    code_touch(p, 126, 127)
    for t in range(4): p(f'ds_read_b64 {v(vH+2*t,2)}, v76 offset:{t*2048}')
    p('ds_read_b32 v79, v79')
    p.wait_vm(tg2); gather2()
    for i in range(4): p(f'v_mov_b32 v{8+i}, v{vWA+i}')
    for i in range(3): p(f'v_mov_b32 v{72+i}, v{84+i}')
    vWA = 8
    p(f's_add_u32 s{sT+6}, s{sCB}, {W_Y:#x}\ns_waitcnt vmcnt(0) lgkmcnt(0)')
    T.ts('w1_done')
    T.bar(); T.prio(cfg.pc)
    tread(W2R, 0, [vTR2], nks=16)
    p('s_waitcnt lgkmcnt(0)')
    T.bar()
    L = p.label('ep')
    p(f's_or_b32 s{sT}, s2, s{sW}\ns_cmp_lg_u32 s{sT}, 0\ns_cbranch_scc1 {L}\nv_mov_b32 v124, {EPOCH}\nv_mov_b32 v125, s{sTAG}\nbuffer_store_dword v125, v124, {srd(SWS)}, 0 offen sc1\n{L}:')
    for it in items: p(it.text)
    p('s_waitcnt lgkmcnt(0)')
    FR = [16, 20, 24, 28, 112, 116, 120, 124]
    gemm_kmajor(T, 16, WOR, vACC, FR, [vAD])
    T.ts('p2_mm')
    T.prio(cfg.pe)
    for t in range(4):
        for h in (0, 2): p(f'v_pk_fma_f32 {v(vZ+4*t+h,2)}, {v(vACC+4*t+h,2)}, {v(vGA+h,2)}, {v(vZ+4*t+h,2)}')
    for t in range(4):
        for h in (0, 2): p(f'v_pk_mul_f32 {v(vACC+4*t+h,2)}, {v(vZ+4*t+h,2)}, {v(vG+h,2)}')
    def pack_swap(src):
        for t in range(4):
            p(f'v_cvt_pk_bf16_f32 v{16+2*t}, v{src+4*t}, v{src+4*t+1}\nv_cvt_pk_bf16_f32 v{17+2*t}, v{src+4*t+2}, v{src+4*t+3}')
        p('v_permlane16_swap_b32 v16, v18\nv_permlane16_swap_b32 v17, v19\nv_permlane16_swap_b32 v20, v22\nv_permlane16_swap_b32 v21, v23')
    pack_swap(vACC)
    T.store([f'buffer_store_dwordx4 v[16:19], v{vST}, {srd(SWS)}, s{sT+6} offen', f'buffer_store_dwordx4 v[20:23], v{vST}, {srd(SWS)}, s{sT+6} offen offset:512'], always_sc1=cfg.pt is None)
    def stat(q, a_of, b_of):
        for t in range(4):
            x = X + 2*t; a = a_of(t)
            if b_of is None: p(f'v_pk_add_f32 {v(x,2)}, {v(a,2)}, {v(a+2,2)}')
            else: p(f'v_pk_mul_f32 {v(x,2)}, {v(a,2)}, {v(b_of(t),2)}')
        if b_of is not None:
            for t in range(4): p(f'v_pk_fma_f32 {v(X+2*t,2)}, {v(a_of(t)+2,2)}, {v(b_of(t)+2,2)}, {v(X+2*t,2)}')
        for t in range(4): p(f'v_add_f32 v{X+8+4*q+t}, v{X+2*t}, v{X+2*t+1}')
    def stats_out(n):
        xreduce4_multi(p, [tuple(X + 8 + 4*q + k for k in range(4)) for q in range(n)])
        for q in range(n): p(f'ds_write_b32 v12, v{X+8+4*q} offset:{q*1024}')
    zt = lambda t: vZ + 4*t
    yt = lambda t: vACC + 4*t
    for q_, (a, b) in enumerate(((zt, None), (zt, zt), (yt, None), (yt, yt), (yt, lambda t: vG), (yt, lambda t: vSB))):
        stat(q_, a, b)
    stats_out(6)
    T.ts('p2_done')
    def pub_st(n, shift, base):
        def f():
            p(f'v_add_u32 v28, {SACC}, v{vLIN}')
            for q in range(n): p(f'ds_read_b128 {v(X+4*q,4)}, v28 offset:{q*1024}')
            p(f'v_mov_b32 v19, s{sTAG}\nv_mov_b32 v23, s{sTAG}\ns_and_b32 s{sT}, s{sJ}, 1\ns_lshl_b32 s{sT}, s{sT}, {shift}\ns_lshr_b32 s{sT+1}, s{sJ}, 1\ns_lshl_b32 s{sT+1}, s{sT+1}, 4\ns_add_u32 s{sT}, s{sT}, s{sT+1}\ns_add_u32 s{sT}, s{sT}, s{sCB}\ns_add_u32 s{sT}, s{sT}, {base:#x}\ns_add_u32 s{sT+1}, s{sT}, 4096\nv_lshlrev_b32 v29, 6, v0\ns_waitcnt lgkmcnt(0)')
            for q in range(n): p(f'v_add_f32 v{X+4*q}, v{X+4*q}, v{X+4*q+1}\nv_add_f32 v{X+4*q+2}, v{X+4*q+2}, v{X+4*q+3}')
            for q in range(n): p(f'v_add_f32 v{16 + q + q//3}, v{X+4*q}, v{X+4*q+2}')
            T.store([f'buffer_store_dwordx4 {v(16+4*i,4)}, v29, {srd(SWS)}, s{sT+i} offen' for i in range(2 if n == 6 else 1)])
        return f
    n_a, n_b, n_c = cfg.w3split
    vA3 = 72
    publish_and_poll(T, 2, 24, extra_w1=pub_st(6, 13, W_ST2), mid=lambda: (p(f's_lshr_b32 s{sM}, s{sW4K}, 2\ns_add_u32 s{sM}, s{sM}, s{sCB}\ns_add_u32 s{sM}, s{sM}, {W_ST2:#x}\ns_add_u32 s{sM+1}, s{sM}, 4096\ns_add_u32 s{sM+2}, s{sM}, 8192\ns_add_u32 s{sM+3}, s{sM}, 12288\ns_add_u32 s{sM+4}, s{sM}, 16384\ns_add_u32 s{sM+5}, s{sM}, 20480\ns_waitcnt lgkmcnt(0)')))
    G = 128
    st2_loads = [f'buffer_load_dwordx4 {v(G+4*i,4)}, v{vLIN}, {srd(SWS)}, s{sM+i} offen sc1' for i in range(4)]
    tks = {}
    def u_tail_touch():
        p(f's_mul_i32 s{sT+7}, s{sOCT}, 320\ns_add_u32 s{sT+7}, s{sT+7}, s{sCB}\ns_add_u32 s{sT+7}, s{sT+7}, 0x26000\nv_min_u32 v44, 4, v0\nv_lshlrev_b32 v44, 7, v44\nbuffer_load_dword v45, v44, {srd(SWS)}, s{sT+7} offen sc1')
    def st2_issue():
        for i in st2_loads: p(i)
        tks[0] = p.vm
    def st2_calc():
        p(f'v_mov_b32 v{G+16}, {GRAM}\nds_read_b64 {v(G+20,2)}, v{G+16} offset:16\nds_read_b128 {v(G+16,4)}, v{G+16}')
        p.wait_vm(tks[0])
        chk = [f'v_xor_b32 v{X+i}, s{sTAG}, v{G+4*i+3}' for i in range(4)] + [f'v_or3_b32 v{X}, v{X}, v{X+1}, v{X+2}', f'v_or_b32 v{X}, v{X}, v{X+3}', f'v_cmp_ne_u32 vcc, 0, v{X}']
        T.poll(st2_loads, chk, first_issued=True)
        K6 = (0, 1, 2, 4, 5, 6)
        for k in K6: p(f'v_add_f32 v{G+k}, v{G+k}, v{G+8+k}')
        quad_allreduce(p, [G + k for k in K6])
    def st2_calc2():
        K6 = (0, 1, 2, 4, 5, 6)
        C = G + 16
        p('s_waitcnt lgkmcnt(0)')
        for k in (0, 2, 3, 4, 5): p(f'v_mul_f32 v{C+k}, {fbits(1/512)}, v{C+k}')
        cG, cGG, cGS, cS, cSS = f'v{C+4}', f'v{C}', f'v{C+2}', f'v{C+5}', f'v{C+3}'
        for k in K6: p(f'v_mul_f32 v{G+k}, {fbits(1/512)}, v{G+k}')
        mu, ezz, ey, eyy, eyg, eys = G, G+1, G+2, G+4, G+5, G+6
        p(f'''
        v_fma_f32 v{X}, -v{mu}, v{mu}, v{ezz}
        v_fma_f32 v{ey}, -v{mu}, {cG}, v{ey}
        v_max_f32 v{X}, 0, v{X}
        v_fma_f32 v{eys}, -v{mu}, {cGS}, v{eys}
        v_add_f32 v{X}, {fbits(1e-5)}, v{X}
        v_mul_f32 v{X+1}, {cGG}, v{mu}
        v_rsq_f32 v{X}, v{X}
        v_fma_f32 v{X+1}, v{eyg}, -2.0, v{X+1}
        v_fma_f32 v{eyy}, v{X+1}, v{mu}, v{eyy}
        v_fma_f32 v{ey}, v{ey}, v{X}, {cS}
        v_mul_f32 v{eyy}, v{eyy}, v{X}
        v_fma_f32 v{eyy}, v{eys}, 2.0, v{eyy}
        v_fma_f32 v{eyy}, v{eyy}, v{X}, {cSS}
        v_fma_f32 v{eyy}, -v{ey}, v{ey}, v{eyy}
        v_max_f32 v{eyy}, 0, v{eyy}
        v_add_f32 v{eyy}, {fbits(1e-5)}, v{eyy}
        v_rsq_f32 v{X+6}, v{eyy}
        v_mul_f32_e64 v{X+1}, -v{mu}, v{X}
        v_mul_f32 v{X+4}, v{X+6}, v{X}
        v_mul_f32 v{X+5}, v{X+6}, v{X+1}
        v_mul_f32_e64 v{X+7}, -v{X+6}, v{ey}
        v_lshrrev_b32 v{X+9}, 1, v{vSA}
        v_add_u32 v{X+8}, {ROWA}, v{vSA}
        v_add_u32 v{X+9}, {ROWH}, v{X+9}
        ds_write_b128 v{X+8}, {v(X+4,4)}
        ds_write_b64 v{X+9}, {v(X,2)}
        ''')
    adma_run(T, adma_k_issue(T, [vLIN]*4), 4, ahead=cfg.ah[1], after={cfg.stpos: st2_issue, 1: lambda: (u_tail_touch(), code_touch(p, 46, 47), w3_go(p, vA3, n_a, 0, cfg.wpre, cfg.wthr)), 2: st2_calc, 3: st2_calc2})
    p('s_waitcnt lgkmcnt(0)')
    T.bar()
    T.ts('st3')
    w3_go(p, vA3, n_a, cfg.wpre, n_b, cfg.wthr)
    T.prio(cfg.px)
    p(f'v_and_b32 v16, 15, v0\nv_lshlrev_b32 v16, 3, v16\nv_add_u32 v16, {ROWH}, v16')
    for t in range(4): p(f'ds_read_b64 {v(24+2*t,2)}, v16 offset:{t*128}')
    p('s_waitcnt lgkmcnt(0)')
    for t in range(4):
        for i in range(4): p(f'v_fma_f32 v{vH+4*t+i}, v{vZ+4*t+i}, v{24+2*t}, v{25+2*t}')
        for i in range(4): p(f'v_fma_f32 v{vH+4*t+i}, v{vH+4*t+i}, v{vG+i}, v{vSB+i}')
    p(f'''
    v_mov_b32 v{vTR}, v{vTR2}
    v_add_u32 v{vTR2}, 0x10000, v{vTR}
    v_add_u32 v13, 0x20000, v{vTR}
    s_add_u32 s{sT+6}, s{sCB}, {W_X1:#x}
    s_add_u32 s{sT+7}, s{sCB}, {W_X1 + 32768:#x}
    s_lshr_b32 s{sL}, s{sROT3}, 2
    s_add_u32 s{sL}, s{sW}, s{sL}
    s_and_b32 s{sL}, s{sL}, 3
    s_lshl_b32 s{sL}, s{sL}, 12
    s_add_u32 s{sL}, s{sL}, s{sT+6}
    s_add_u32 s{sL+1}, s{sL}, 16384
    s_add_u32 s{sL+2}, s{sL}, 32768
    s_add_u32 s{sL+3}, s{sL}, 49152
    s_waitcnt vmcnt(0)
    ''')
    T.ts('w3_done')
    T.bar(); T.prio(cfg.pc); T.bar()
    gemm_kmajor(T, 16, W2R, vACC, FR, [vAD], late=lambda j, t: t == (3 if (j // 4) & 1 else 0))
    T.ts('p4_mm')
    T.prio(cfg.pe)
    for t in range(4):
        for h in (0, 2): p(f'v_pk_add_f32 {v(vH+4*t+h,2)}, {v(vH+4*t+h,2)}, {v(vACC+4*t+h,2)}')
    pack_swap(vH)
    T.store([f'buffer_store_dwordx4 v[16:19], v{vSTX}, {srd(SWS)}, s{sT+6} offen', f'buffer_store_dwordx4 v[20:23], v{vSTX}, {srd(SWS)}, s{sT+7} offen'])
    ht = lambda t: vH + 4*t
    stat(0, ht, None); stat(1, ht, ht)
    stats_out(2)
    T.ts('p4_done')
    def mid4():
        mk_srd(p, SW, P_W4, 1376 * 1024)
        p(f's_add_u32 s{sKOFF}, s{sROT4}, s{sW}\ns_cmp_ge_u32 s{sKOFF}, 43\ns_cselect_b32 s{sT}, 43, 0\ns_sub_u32 s{sKOFF}, s{sKOFF}, s{sT}\ns_lshl_b32 s{sKOFF}, s{sKOFF}, 15\ns_add_u32 s{sT+6}, s{sCB}, {W_ST4:#x}')
        for i in range(16): p(f'v_fma_f32 v{vZ+i}, v{vH+i}, v{vGB + (i & 3)}, v{vZ+i}')
    publish_and_poll(T, 4, 24, extra_w1=pub_st(2, 12, W_ST4), mid=mid4)
    iss = adma_k_issue(T, [vLIN]*4)
    iss(0); t0 = p.vm; iss(1)
    p(f's_add_u32 s{sFV}, s{sTAG}, 5\nv_mov_b32 v25, s{sFV}')
    p.wait_vm(t0); T.bar()
    GS = 64
    st4_loads = [f'buffer_load_dwordx4 {v(GS+4*i,4)}, v{vLIN}, {srd(SWS)}, s{sM+4+i} offen sc1' for i in range(2)]
    for i in st4_loads: p(i)
    t1 = p.vm
    iss(2); iss(3); t3 = p.vm
    p.wait_vm(t1)
    T.poll(st4_loads, [f'v_xor_b32 v16, s{sTAG}, v{GS+3}', f'v_xor_b32 v17, s{sTAG}, v{GS+7}', 'v_or_b32 v16, v16, v17', 'v_cmp_ne_u32 vcc, 0, v16'], first_issued=True)
    tok = {}
    loc5 = [PARK + c*16384 for c in range(5)] + [0, 16384, 32768, PARK, PARK + 16384, PARK + 32768]
    def issue5(c):
        w_issue(loc5[c], 43); tok[c] = p.vm
    def tread5(c):
        tread(W4R + 16*c, loc5[c], [vTR, vTR2, 13], nks=4 if c < 10 else 3)
    p(f'v_add_f32 v{GS}, v{GS}, v{GS+4}\nv_add_f32 v{GS+1}, v{GS+1}, v{GS+5}')
    quad_allreduce(p, (GS, GS + 1))
    p(f'''
    v_mul_f32 v16, {fbits(-1/512)}, v{GS}
    v_mul_f32 v{GS+1}, {fbits(1/512)}, v{GS+1}
    v_fma_f32 v{GS+1}, -v16, v16, v{GS+1}
    v_max_f32 v{GS+1}, 0, v{GS+1}
    v_add_f32 v{GS+1}, {fbits(1e-5)}, v{GS+1}
    v_rsq_f32 v{GS}, v{GS+1}
    v_sqrt_f32 v19, v{GS+1}
    v_mul_f32 v17, {fbits(K1)}, v{GS}
    v_mul_f32 v18, v{GS}, v{GS}
    v_mul_f32 v18, v18, v{GS}
    v_mul_f32 v18, {fbits(K2)}, v18
    v_add_u32 v20, {ROW3}, v{vSA}
    ds_write_b128 v20, v[16:19]
    ''')
    if cfg.w5pre: issue5(0)
    p.wait_vm(t3)
    p('s_waitcnt lgkmcnt(0)')
    T.bar()
    T.ts('a5_done')
    L = p.label('xl'); vm0 = p.vm
    p(f's_cmp_lg_u32 s{sW}, 0\ns_cbranch_scc1 {L}')
    T.store([f'buffer_store_dword v25, v24, {srd(SWS)}, s{sFA} offen'])
    p(f'{L}:'); p.vm = vm0
    for c in range(cfg.w5pre, 3): issue5(c)
    xl = [f'buffer_load_dword v26, v27, {srd(SWS)}, s{sFA} offen sc1']
    p(xl[0]); txl = p.vm
    code_touch(p, 28, 29)
    mk_srd(p, SA, P_OUT, 2048 * 1024)
    p(f'''
    v_add_u32 v6, 0x10000, v{vAD}
    v_add_u32 v7, 0x20000, v{vAD}
    v_and_b32 v2, 31, v0
    s_lshl_b32 s{sT+1}, s{sR}, 6
    v_add_u32 v2, s{sT+1}, v2
    v_lshlrev_b32 v2, 10, v2
    v_lshrrev_b32 v12, 5, v0
    v_add_u32 v12, s{sOCT}, v12
    v_lshl_add_u32 v2, v12, 4, v2
    s_mov_b32 s{sT+7}, 0x8000
    ''')
    p.wait_vm(tok[0]); issue5(3)
    rb('M1')
    p.wait_vm(tok[1]); issue5(4)
    tread5(0)
    p.wait_vm(txl)
    T.poll(xl, [f'v_subrev_u32 v26, s{sFV}, v26', 'v_cmp_lt_u32 vcc, 7, v26'], first_issued=True)
    issue5(5)
    rb('X')
    for c in (1, 2): tread5(c)
    p.wait_vm(tok[3]); issue5(6)
    rb('M2')
    tread5(3)
    p.wait_vm(tok[4]); issue5(7)
    rb('Y')
    tread5(4)
    p.wait_vm(tok[5]); issue5(8)
    p.wait_vm(tok[6]); issue5(9)
    rb('M3')
    for c in (5, 6): tread5(c)
    p.wait_vm(tok[7]); issue5(10)
    T.ts('w5_done')
    T.bar()
    tread5(7)
    p('s_waitcnt vmcnt(0) lgkmcnt(0)')
    T.prio(cfg.pc); T.bar()
    for c in (8, 9, 10): tread5(c)
    p('s_waitcnt lgkmcnt(0)')
    gemm_kmajor(T, 43, W4R, vACC, [16, 20, 24, 28, 64, 68, 72, 76], [vAD, 6, 7], slot_of=lambda c: c % 9, bars=cfg.ubars)
    T.ts('p6_mm')
    for t in range(4):
        for h in (0, 2): p(f'v_pk_fma_f32 {v(vZ+4*t+h,2)}, {v(vACC+4*t+h,2)}, {v(vGB+h,2)}, {v(vZ+4*t+h,2)}')
    pack_swap(vZ)
    p(f'buffer_store_dwordx4 v[16:19], v2, {srd(SA)}, 0 offen\nbuffer_store_dwordx4 v[20:23], v2, {srd(SA)}, s{sT+7} offen')
    T.ts('end')
    return T

def build(cfg):
    CT[0] = cfg.ctouch
    A = team_a(cfg); B = team_b(cfg)
    assert A.nbar == B.nbar, (A.nbar, B.nbar)
    P = Prog()
    if cfg.ts:
        P(f's_memrealtime s[{sTS}:{sTS+1}]\ns_memtime s[96:97]\ns_waitcnt lgkmcnt(0)\nv_mov_b32 v15, s{sTS}\nv_mov_b32 v63, s{sTS}')
    if cfg.diag_spin:
        P('s_memrealtime s[100:101]')
    P(f'''
    s_load_dwordx16 s[8:23], s[0:1], 0
    s_load_dwordx8 s[24:31], s[0:1], 64
    s_load_dwordx2 s[32:33], s[0:1], 96
    s_cmp_ge_u32 s2, 256
    s_cbranch_scc1 L_exit
    v_lshrrev_b32 v1, 6, v0
    v_and_b32 v0, 63, v0
    v_readfirstlane_b32 s3, v1
    s_getreg_b32 s{sXCC}, hwreg(HW_REG_XCC_ID)
    s_lshr_b32 s4, s2, 3
    s_and_b32 s{sJ}, s4, 7
    s_cmp_lg_u32 s3, 7
    s_cbranch_scc1 L_nopf
    s_getpc_b64 s[{SB}:{SB+1}]
    L_pc:
    s_mov_b32 s{SB+2}, L_codeend-L_pc
    s_mov_b32 s{SB+3}, 0x20000
    s_lshl_b32 s5, s{sJ}, 13
    v_lshlrev_b32 v1, 7, v0
    buffer_load_dword v95, v1, {srd(SB)}, s5 offen
    L_nopf:
    s_lshr_b32 s{sQC}, s4, 3
    s_and_b32 s5, s2, 7
    s_lshl_b32 s5, s5, 2
    s_add_u32 s{sR}, s5, s{sQC}
    s_add_u32 s{sCB}, s{sR}, 1
    s_lshl_b32 s{sCB}, s{sCB}, 20
    s_add_u32 s{sFA}, s{sCB}, {W_FLAG:#x}
    s_and_b32 s{sW}, s3, 3
    s_mul_i32 s{sW3K}, s{sW}, 3072
    s_lshl_b32 s{sW4K}, s{sW}, 12
    s_lshl_b32 s{sOCT}, s{sJ}, 2
    s_add_u32 s{sOCT}, s{sOCT}, s{sW}
    s_lshl_b32 s{sOCT}, s{sOCT}, 1
    s_cmp_eq_u32 s{sJ}, 3
    s_cselect_b32 s{sROT4}, s{sQC}, 0
    s_mul_i32 s{sROT}, s{sROT4}, {cfg.rj3}
    s_mul_i32 s{sROT4}, s{sROT4}, {cfg.rj4}
    s_mov_b32 s{sROT3}, 0
    s_and_b32 s{sROT2}, s{sROT}, 8
    s_mov_b32 s{sBUD}, 200000
    s_mov_b32 s{sFAST}, 0
    v_lshlrev_b32 v1, 2, v0
    v_add_u32 v1, {WF}, v1
    v_mov_b32 v2, 0
    ds_write_b32 v1, v2
    s_cmp_ge_u32 s3, 4
    s_cbranch_scc1 L_teamB
    ''')
    def tail(T):
        p = T.p
        if cfg.ts:
            p(f's_memtime s[{sTS}:{sTS+1}]\ns_waitcnt lgkmcnt(0)\ns_sub_u32 s{sTS}, s{sTS}, s96\nv_writelane_b32 v{T.vTS}, s{sTS}, 62')
            T.nts = 61; T.ts('x'); T.tsnames.pop()
            p(f's_lshl_b32 s{sT}, s2, 3\ns_add_u32 s{sT}, s{sT}, s3\ns_lshl_b32 s{sT}, s{sT}, 8\ns_add_u32 s{sT}, s{sT}, {TSBASE:#x}\nv_lshlrev_b32 v1, 2, v0\nbuffer_store_dword v{T.vTS}, v1, {srd(SWS)}, s{sT} offen')
        if cfg.diag_spin:
            L = p.label('sp')
            p(f'{L}:\ns_memrealtime s[96:97]\ns_waitcnt lgkmcnt(0)\ns_sub_u32 s96, s96, s100\ns_cmp_lt_u32 s96, {cfg.diag_spin}\ns_cbranch_scc1 {L}')
        p('s_endpgm')
    tail(A); tail(B)
    hdr = open('cdna_kernels/' + NAME + '.s.ref').read().split('\n')
    top = [l for l in hdr if l.startswith(';') and '@launch' not in l and not l.startswith('; Override') and not l.startswith('; grid=')]
    s = '\n'.join(top) + f'\n; @launch grid=(256,1,1) block=(512,1,1) lds={LDS_BYTES}\n'
    s += f'.amdgcn_target "amdgcn-amd-amdhsa--gfx950"\n.text\n.globl {NAME}_kernel\n.p2align 8\n.type {NAME}_kernel,@function\n{NAME}_kernel:\n'
    b0, b1 = B.p.render().split('.SPLIT\n')
    a0, a1 = A.p.render().split('.SPLIT\n')
    s += P.render() + a0 + '    s_branch L_teamA2\nL_teamB:\n' + b0 + '    s_branch L_teamB2\nL_teamA2:\n' + a1 + 'L_teamB2:\n' + b1 + 'L_exit:\n    s_endpgm\nL_codeend:\n'
    s += f'''.section .rodata,"a"
.p2align 6
.amdhsa_kernel {NAME}_kernel
  .amdhsa_next_free_vgpr 256
  .amdhsa_next_free_sgpr 102
  .amdhsa_accum_offset 256
  .amdhsa_group_segment_fixed_size 0
  .amdhsa_kernarg_size 104
  .amdhsa_user_sgpr_count 2
  .amdhsa_user_sgpr_kernarg_segment_ptr 1
  .amdhsa_system_sgpr_workgroup_id_x 1
.end_amdhsa_kernel
'''
    return s, A.tsnames, B.tsnames

if __name__ == '__main__':
    cfg = Cfg()
    out = sys.argv[1]
    for a in sys.argv[2:]:
        k, val = a.split('=', 1)
        assert hasattr(cfg, k), k
        setattr(cfg, k, eval(val))
    s, ta, tb = build(cfg)
    if cfg.ts:
        if cfg.tscyc: s = '; TSCYC\n' + s
        s = f'; TSA {" ".join(ta)}\n; TSB {" ".join(tb)}\n' + s
    open(out, 'w').write(s)
```
